```python
import torch

def _softmax(x, axis=-1):
    return torch.softmax(x, dim=axis)
def _gelu(x):
    return torch.nn.functional.gelu(x, approximate="tanh")
def _silu(x):
    return torch.nn.functional.silu(x)
def _sigmoid(x):
    return torch.sigmoid(x)
def _layernorm(x, axis=-1, eps=1e-5):
    m = x.mean(dim=axis, keepdim=True)
    v = x.var(dim=axis, keepdim=True, unbiased=False)
    return (x - m) / torch.sqrt(v + eps)
def _scatter_add(tgt, idx, src, axis=0):
    return tgt.clone().index_add_(axis, idx, src)
def _segment_sum(src, seg, n):
    out = torch.zeros((n,) + src.shape[1:], dtype=src.dtype)
    return out.index_add_(0, seg, src)
def _pad(x, pw):
    flat = tuple(v for pair in reversed(pw) for v in pair)
    return torch.nn.functional.pad(x, flat)

kernel_name = 'parallel_sum__linear_attn_block__dense_activation_squared_relu__prompt'

def setup_inputs():

    _w = (lambda a: (lambda t: t.to(torch.bfloat16) if t.is_floating_point() else t)(torch.as_tensor(a)))
    def _A_setup():
        B, S, D = 1, 2048, 512
        return {
            "x": _w((lambda *s: torch.randn(*s, dtype=torch.bfloat16) * 0.05)(B, S, D)),
            "wqkv": _w((lambda *s: torch.randn(*s, dtype=torch.bfloat16) * 0.4)(D, 3 * D)),
            "wo": _w((lambda *s: torch.randn(*s, dtype=torch.bfloat16) * 0.2)(D, D)),
        }
    _A_in = _A_setup()

    def _B_setup():
        B, S, D, F = 1, 2048, 512, 1376
        return {
            "x": _w((lambda *s: torch.randn(*s, dtype=torch.bfloat16) * 0.05)(B, S, D)),
            "w1": _w((lambda *s: torch.randn(*s, dtype=torch.bfloat16) * 0.05)(D, F)),
            "b1": _w((lambda *s: torch.randn(*s, dtype=torch.bfloat16) * 0.2)(F)),
            "w2": _w((lambda *s: torch.randn(*s, dtype=torch.bfloat16) * 0.05)(F, D)),
            "b2": _w((lambda *s: torch.randn(*s, dtype=torch.bfloat16) * 0.8)(D)),
        }
    _B_in = _B_setup()

    return {
        "A_x": _A_in["x"],
        "A_wqkv": _A_in["wqkv"],
        "A_wo": _A_in["wo"],
        "B_x": _B_in["x"],
        "B_w1": _B_in["w1"],
        "B_b1": _B_in["b1"],
        "B_w2": _B_in["w2"],
        "B_b2": _B_in["b2"],
    }

def reference(A_x, A_wqkv, A_wo, B_x, B_w1, B_b1, B_w2, B_b2):
    def _A_ref(x, wqkv, wo):
        B, S, D = x.shape
        H = 32; Dh = D // H
        qkv = (lambda x, *d: x.permute(*d))((x @ wqkv).reshape(B, S, 3, H, Dh), 2, 0, 3, 1, 4)
        q, k, v = qkv[0], qkv[1], qkv[2]
        phi = lambda t: torch.where(t > 0, t + 1, torch.exp(t)) + 1e-6
        pq, pk = phi(q), phi(k)
        kv = torch.einsum("bhsd,bhse->bhde", pk, v)
        z = torch.einsum("bhsd->bhd", pk)
        num = torch.einsum("bhqd,bhde->bhqe", pq, kv)
        den = torch.einsum("bhqd,bhd->bhq", pq, z)[..., None] + 1e-6
        o = num / den
        return (lambda x, *d: x.permute(*d))(o, 0, 2, 1, 3).reshape(B, S, D) @ wo

    def _B_ref(x, w1, b1, w2, b2):
        h = torch.einsum("bsd,df->bsf", x, w1) + b1
        zero = torch.zeros_like(h)
        r = torch.where(h > zero, h, zero)
        h = r * r
        out = torch.einsum("bsf,fd->bsd", h, w2) + b2
        return out

    x = A_x
    xn = _layernorm(x, axis=-1)
    return x + _A_ref(xn, A_wqkv, A_wo) + _B_ref(xn, B_w1, B_b1, B_w2, B_b2)
```

```python
import re

_REG = re.compile(r"^(-|\|)?([vs])(\d+)\|?$")
_RNG = re.compile(r"^(-|\|)?([vs])\[(\d+):(\d+)\]\|?$")


def regs_of(tok):
    tok = tok.strip()
    m = _REG.match(tok)
    if m:
        return {(m.group(2), int(m.group(3)))}
    m = _RNG.match(tok)
    if m:
        return {(m.group(2), i) for i in range(int(m.group(3)), int(m.group(4)) + 1)}
    if tok == "vcc":
        return {("s", 106), ("s", 107)}
    if tok == "exec":
        return {("s", 126), ("s", 127)}
    if tok == "m0":
        return {("s", 124)}
    return set()


TRANS = ("v_exp_f32", "v_log_f32", "v_rcp_f32", "v_rsq_f32", "v_sqrt_f32")


class Ins:
    __slots__ = ("text", "op", "kind", "w", "r", "srcc", "ab", "passes", "data", "states", "lds_dma")

    def __init__(self, text):
        self.text = text
        t = text.split(";")[0].strip()
        self.w = set(); self.r = set(); self.srcc = set(); self.ab = set(); self.data = set()
        self.passes = 0; self.states = 1; self.lds_dma = False
        if not t or t.endswith(":") or t.startswith("."):
            self.op = t; self.kind = "label" if t.endswith(":") else "dir"; self.states = 0
            return
        parts = t.split(None, 1)
        op = parts[0]; self.op = op
        rest = parts[1] if len(parts) > 1 else ""
        ops = [o.strip() for o in rest.split(",")] if rest else []
        mods = []
        if ops:
            joined = []
            depth = 0; cur = ""
            for ch in rest:
                if ch == "[": depth += 1
                if ch == "]": depth -= 1
                if ch == "," and depth == 0:
                    joined.append(cur.strip()); cur = ""
                else:
                    cur += ch
            joined.append(cur.strip())
            last = joined[-1].split()
            joined[-1] = last[0] if last else ""
            mods = last[1:]
            ops = joined
        R = [regs_of(o) for o in ops]
        if op.startswith("v_mfma"):
            self.kind = "mfma"
            self.w = R[0]; self.ab = R[1] | R[2]; self.srcc = R[3]; self.r = self.ab | self.srcc
            self.passes = 8 if "32x32" in op else 4
        elif op.startswith("v_"):
            self.kind = "valu"
            self.w = set(R[0]); self.r = set().union(*R[1:]) if len(R) > 1 else set()
            if op.startswith(("v_fmac", "v_permlane", "v_dot2c", "v_writelane")):
                self.r |= R[0]
            if op.startswith("v_permlane"):
                self.w |= R[1]
            if "_dpp" in op:
                self.r |= R[0]
        elif op.startswith("ds_"):
            self.kind = "ds"
            if op.startswith("ds_read"):
                self.w = R[0]; self.r = R[1]
            else:
                self.r = set().union(*R)
        elif op.startswith(("buffer_", "global_")):
            self.kind = "vmem"
            if "lds" in mods:
                self.lds_dma = True
                self.r = set().union(*R) | {("s", 124)}
            elif "_load" in op:
                self.w = R[0]; self.r = set().union(*R[1:])
            else:
                self.r = set().union(*R)
                d = R[0] if op.startswith("buffer_") else R[1]
                if len(d) >= 3:
                    self.data = d
        elif op.startswith(("s_load", "s_memtime", "s_memrealtime")):
            self.kind = "smem"; self.w = R[0]; self.r = set().union(*R[1:]) if len(R) > 1 else set()
        elif op == "s_nop":
            self.kind = "nop"; self.states = int(ops[0]) + 1
        elif op.startswith(("s_cmp", "s_cbranch", "s_branch", "s_waitcnt", "s_barrier", "s_endpgm", "s_setprio", "s_sleep", "s_bitcmp")):
            self.kind = "salu"; self.r = set().union(*R) if R else set()
        else:
            self.kind = "salu"; self.w = R[0] if R else set(); self.r = set().union(*R[1:]) if len(R) > 1 else set()


def _v(s):
    return {x for x in s if x[0] == "v"}


def _s(s):
    return {x for x in s if x[0] == "s"}


def need(p, c):
    n = 0
    if p.kind == "valu":
        pv, ps = _v(p.w), _s(p.w)
        if c.kind == "mfma" and pv & c.r: n = max(n, 2)
        if c.kind == "valu":
            if pv & c.r:
                if c.op.startswith(("v_readfirstlane", "v_readlane")): n = max(n, 1)
                if c.op.startswith("v_permlane") or "_dpp" in c.op: n = max(n, 2)
                if p.op.startswith(TRANS): n = max(n, 1)
            if ps & c.r: n = max(n, 2)
        if c.kind == "vmem" and ps & c.r: n = max(n, 5)
        if c.kind in ("salu", "smem") and ps & c.r: n = max(n, 1)
    if p.kind == "mfma":
        big = 12 if p.passes == 8 else 8
        if c.kind == "mfma":
            if p.w & c.ab: n = max(n, big)
            if p.w & c.srcc:
                if not (p.w == c.srcc and p.passes == c.passes): n = max(n, big - 2)
            elif p.w & c.w:
                n = max(n, big)
        elif c.kind in ("valu", "ds", "vmem"):
            if p.w & (c.r | c.w): n = max(n, big)
        if c.kind == "valu" and p.srcc & c.w: n = max(n, 7 if p.passes == 8 else 3)
    if p.kind == "vmem" and p.data and c.kind in ("valu", "mfma", "ds", "vmem") and p.data & c.w:
        n = max(n, 2)
    if p.kind == "salu" and ("s", 124) in p.w and c.lds_dma: n = max(n, 1)
    return n


class Asm:
    def __init__(self):
        self.lines = []

    def __call__(self, text):
        for t in text.split("\n"):
            t = t.strip()
            if t:
                self.lines.append(t)

    def finish(self):
        out = []
        npad = 0
        for t in self.lines:
            c = Ins(t)
            if c.states and c.kind != "nop":
                dist = 0; pad = 0
                for p in reversed(out):
                    if p.op in ("s_branch", "s_endpgm"):
                        break
                    if p.states == 0:
                        continue
                    k = need(p, c)
                    if k > dist:
                        pad = max(pad, k - dist)
                    dist += p.states
                    if dist >= 12:
                        break
                if pad:
                    out.append(Ins(f"s_nop {pad - 1}")); npad += 1
            out.append(c)
        self.npad = npad
        return "\n".join(("" if i.kind in ("label",) else "    ") + i.text for i in out)


class Alloc:
    def __init__(self, start, limit):
        self.n = start; self.limit = limit

    def __call__(self, count=1, align=1):
        self.n = -(-self.n // align) * align
        r = self.n
        self.n += count
        assert self.n <= self.limit, "out of registers"
        return r


def vr(b, n):
    return f"v[{b}:{b + n - 1}]" if n > 1 else f"v{b}"


def sr(b, n):
    return f"s[{b}:{b + n - 1}]" if n > 1 else f"s{b}"


def interleave(primary, *streams):
    gaps = [[] for _ in primary]
    for lst, g0, g1 in streams:
        ng = g1 - g0 + 1
        for k, ins in enumerate(lst):
            gaps[g0 + (k * ng) // len(lst)].append(ins)
    out = []
    for p, g in zip(primary, gaps):
        out.append(p); out.extend(g)
    return out
```

```python
import sys, os
sys.path.insert(0, os.path.dirname(os.path.abspath(__file__)))
from asmlib import Asm, Alloc, vr, sr, interleave

NAME = "parallel_sum__linear_attn_block__dense_activation_squared_relu__prompt_kernel"

NSTEP_H, NSTEP = 86, 118
RT_STRIDE = NSTEP * 2048
WS_A2 = 0
WS_KVP = 32 * RT_STRIDE
WS_ZP = WS_KVP + 16 * 16 * 1024
WS_FLAG = WS_ZP + 16 * 16 * 128
WS_END = WS_FLAG + 80 * 128
WS_STAMP = 16 << 20

L_X, L_W, L_MISC = 0, 49152, 147456
L_R, L_MS, L_CS, L_FL, L_KVX = L_MISC, L_MISC + 512, L_MISC + 1024, L_MISC + 4096, L_MISC + 8192
LDS_BYTES = 163840

sWAVE, sI, sG, sTYPE, sRT, sCT, sW = 3, 26, 27, 28, 29, 30, 31
pX, pWQKV, pWO, pW1, pB1, pW2, pB2, pOUT, pDBG, pWS = 4, 6, 8, 12, 14, 16, 18, 20, 22, 24
sPOLL = 64
SPIN = 200000


class Cfg:
    stamps = False
    rot1 = 1
    rot2 = 1
    ring = 5
    code_pf = True
    psleep = 0
    fstride = 128


def srd(A, d, base, size):
    A(f"s_mov_b32 s{d}, s{base}")
    A(f"s_mov_b32 s{d+1}, s{base+1}")
    A(f"s_mov_b32 s{d+2}, {size}")
    A(f"s_mov_b32 s{d+3}, 0x20000")


class Gen:
    def __init__(self, cfg):
        self.cfg = cfg
        self.A = Asm()
        self.nlabel = 0
        self.vSTAMP = 255

    def label(self, p):
        self.nlabel += 1
        return f"L_{p}_{self.nlabel}"

    def stamp(self, k, real=False):
        if not self.cfg.stamps:
            return
        A = self.A
        A(("s_memrealtime" if real else "s_memtime") + " s[100:101]")
        A("s_waitcnt lgkmcnt(0)")
        A(f"v_writelane_b32 v{self.vSTAMP}, s100, {k}")

    def stamp_out(self):
        if not self.cfg.stamps:
            return
        A = self.A
        srd(A, 96, pWS, WS_STAMP + (1 << 20))
        A("s_lshl_b32 s100, s2, 3")
        A(f"s_add_u32 s100, s100, s{sWAVE}")
        A("s_lshl_b32 s100, s100, 8")
        A(f"s_add_u32 s100, s100, {WS_STAMP}")
        A("v_lshlrev_b32 v254, 2, v0")
        A(f"buffer_store_dword v{self.vSTAMP}, v254, s[96:99], s100 offen")

    def wait_flags(self, dSRD, sOff, vOff, vT):
        A = self.A
        lp, ok = self.label("fl"), self.label("flok")
        A(f"s_mov_b32 s80, {SPIN}")
        A(f"{lp}:")
        A(f"buffer_load_dword v{vT}, v{vOff}, s[{dSRD}:{dSRD+3}], s{sOff} offen sc1")
        A("s_sub_u32 s80, s80, 1")
        A(f"s_cbranch_scc1 {ok}")
        A("s_waitcnt vmcnt(0)")
        A(f"v_cmp_eq_u32 vcc, 0, v{vT}")
        A("s_cmp_eq_u64 vcc, 0")
        if self.cfg.psleep:
            A(f"s_cbranch_scc1 {ok}")
            A(f"s_sleep {self.cfg.psleep}")
            A(f"s_branch {lp}")
        else:
            A(f"s_cbranch_scc0 {lp}")
        A(f"{ok}:")

    def set_flag(self, sSRD, sOff, vOne):
        A = self.A
        A("s_mov_b64 exec, 1")
        A(f"buffer_store_dword v{vOne}, off, s[{sSRD}:{sSRD+3}], s{sOff} sc1")
        A("s_mov_b64 exec, -1")

    def lds_spin(self, vAddr, off, n, vT, reads):
        A = self.A
        lp, ok = self.label("ls"), self.label("lsok")
        A(f"s_mov_b32 s80, {SPIN}")
        A(f"{lp}:")
        A({1: "ds_read_b32", 4: "ds_read_b128"}[n] + f" {vr(vT, n)}, v{vAddr} offset:{off}")
        for x in reads:
            A(x)
        A("s_sub_u32 s80, s80, 1")
        A(f"s_cbranch_scc1 {ok}")
        A(f"s_waitcnt lgkmcnt({min(len(reads), 15)})")
        if n == 4:
            A(f"v_and_b32 v{vT}, v{vT}, v{vT+1}")
            A(f"v_and_b32 v{vT+2}, v{vT+2}, v{vT+3}")
            A(f"v_and_b32 v{vT}, v{vT}, v{vT+2}")
        A(f"v_readfirstlane_b32 s81, v{vT}")
        A("s_cmp_eq_u32 s81, 0")
        A("s_waitcnt lgkmcnt(0)")
        A(f"s_cbranch_scc1 {lp}")
        A(f"{ok}:")
        A("s_waitcnt lgkmcnt(0)")

    def entry(self):
        A = self.A
        A("s_cmp_ge_u32 s2, 256")
        A("s_cbranch_scc0 L_go")
        A("s_endpgm")
        A("L_go:")
        A("s_load_dwordx16 s[4:19], s[0:1], 0")
        A("s_load_dwordx4 s[20:23], s[0:1], 64")
        A("s_load_dwordx2 s[24:25], s[0:1], 80")
        A("v_lshrrev_b32 v1, 6, v0")
        A("v_and_b32 v0, 63, v0")
        A(f"v_readfirstlane_b32 s{sWAVE}, v1")
        A("s_and_b32 s80, s2, 1")
        A("s_bfe_u32 s81, s2, 0x20001")
        A("s_lshr_b32 s82, s2, 3")
        A(f"s_and_b32 s{sI}, s82, 7")
        A(f"s_lshl3_add_u32 s{sI}, s80, s{sI}")
        A(f"s_bfe_u32 s{sTYPE}, s82, 0x10003")
        A(f"s_lshr_b32 s{sG}, s82, 4")
        A(f"s_lshl1_add_u32 s{sG}, s81, s{sG}")
        A(f"s_and_b32 s{sRT}, s82, 3")
        A(f"s_lshl2_add_u32 s{sRT}, s81, s{sRT}")
        A(f"s_lshl4_add_u32 s{sRT}, s80, s{sRT}")
        A(f"s_lshr_b32 s{sCT}, s82, 2")
        A(f"s_and_b32 s{sW}, s{sWAVE}, 3")
        A(f"s_mul_i32 s83, s{sG}, 5")
        A(f"s_min_u32 s84, s{sG}, 3")
        A("s_add_u32 s83, s83, s84")
        if self.cfg.stamps:
            A(f"v_mov_b32 v{self.vSTAMP}, 0")
        A(f"s_cmp_ge_u32 s{sWAVE}, 4")
        A("s_cbranch_scc0 L_C")

    def lwave(self):
        A, cfg = self.A, self.cfg
        dX, dW, dW2, dWO, dAH, dAO, dOUT, dB2, dFL, dDBG = 32, 36, 40, 44, 48, 52, 56, 60, 64, 68
        sSTR, sXB, sLX, sLW, sKX, sKW, sKS, sT, sS2, sSA, sFH, sFO = 84, 85, 86, 87, 88, 89, 90, 91, 92, 93, 94, 95
        al = Alloc(1, 254)
        acc = al(64, 4)
        NREG = 12
        breg = al(8 * NREG, 4)
        bwork = al(16, 4)
        R = cfg.ring
        aring = al(8 * (R + 1), 4)
        vtr = al(6)
        vW2a, vW2b, vA0, vA1, vO, vF, vP = al(), al(), al(), al(), al(), al(), al()
        vX = [aring + k for k in range(4)]
        vW = [aring + 4 + k for k in range(6)]
        t0, t1, t2, t3 = [aring + 10 + k for k in range(4)]
        vrow, vgsw = aring + 14, aring + 15

        A(f"v_lshrrev_b32 v{vrow}, 3, v0")
        A(f"v_and_b32 v{t0}, 7, v0")
        A(f"v_lshrrev_b32 v{t1}, 4, v0")
        A(f"v_xor_b32 v{t2}, v{t0}, v{t1}")
        A(f"v_lshlrev_b32 v{t2}, 4, v{t2}")
        A(f"v_lshl_add_u32 v{vX[0]}, v{vrow}, 10, v{t2}")
        A(f"v_xor_b32 v{vX[1]}, 0x2040, v{vX[0]}")
        A(f"v_add_u32 v{vX[2]}, 0x4000, v{vX[0]}")
        A(f"v_add_u32 v{vX[3]}, 0x4000, v{vX[1]}")
        A(f"v_and_b32 v{t1}, 1, v{t1}")
        A(f"v_lshlrev_b32 v{t1}, 2, v{t1}")
        A(f"v_xor_b32 v{t1}, v{t0}, v{t1}")
        A(f"v_lshlrev_b32 v{vgsw}, 4, v{t1}")
        A(f"s_cmp_eq_u32 s{sTYPE}, 0")
        A(f"s_movk_i32 s{sSTR}, 2752")
        A(f"s_cmovk_i32 s{sSTR}, 3072")
        A(f"s_lshl_b32 s80, s{sG}, 7")
        A("s_lshl_b32 s81, s83, 6")
        A(f"s_cmp_eq_u32 s{sTYPE}, 0")
        A("s_cselect_b32 s80, s80, s81")
        A("s_cselect_b32 s81, 0x400, 0")
        A("s_movk_i32 s82, 0x80")
        A("s_cmovk_i32 s82, 0x800")
        A(f"s_cselect_b32 s{sT}, 0, 0x100")
        A("s_add_u32 s81, s81, s80")
        A("s_add_u32 s82, s82, s80")
        A(f"s_add_u32 s80, s{sT}, s80")
        A(f"s_lshl_b32 s{sT}, s{sW}, 4")
        A(f"v_add_u32 v{t0}, s{sT}, v{vrow}")
        A(f"v_mul_u32_u24 v{t0}, s{sSTR}, v{t0}")
        A(f"v_add_u32 v{t0}, v{t0}, v{vgsw}")
        A(f"v_add_u32 v{vW[0]}, s81, v{t0}")
        A(f"v_add_u32 v{vW[1]}, s82, v{t0}")
        A(f"v_add_u32 v{vW[2]}, s80, v{t0}")
        A(f"s_cmp_ge_u32 s{sG}, 3")
        A(f"s_cselect_b32 s80, s{sTYPE}, 0")
        A("s_lshl_b32 s80, s80, 6")
        A(f"v_and_b32 v{t1}, s80, v{vgsw}")
        A(f"v_lshl_add_u32 v{vW[2]}, v{t1}, 24, v{vW[2]}")
        A(f"s_lshl_b32 s{sT}, s{sSTR}, 3")
        for u in range(3):
            A(f"v_add_u32 v{vW[3+u]}, s{sT}, v{vW[u]}")
        A(f"s_lshl_b32 s{sXB}, s{sI}, 2")
        A(f"s_add_u32 s{sXB}, s{sXB}, s{sW}")
        A(f"s_lshl_b32 s{sXB}, s{sXB}, 15")
        A(f"s_lshl_b32 s{sLX}, s{sW}, 12")
        A(f"s_mul_i32 s{sLW}, s{sW}, 6144")
        A(f"s_add_u32 s{sLW}, s{sLW}, {L_W}")
        A(f"s_lshl_b32 s{sSTR}, s{sSTR}, 6")
        if cfg.rot1 > 1:
            A(f"s_lshl1_add_u32 s80, s{sG}, s{sTYPE}")
            A(f"s_add_u32 s80, s80, s{sI}")
            A(f"s_and_b32 s80, s80, {cfg.rot1 - 1}")
            A(f"s_mul_i32 s{sKS}, s80, {8 // cfg.rot1}")
        else:
            A(f"s_mov_b32 s{sKS}, 0")
        A("s_waitcnt lgkmcnt(0)")
        srd(A, dX, pX, 2097152)
        A(f"s_cmp_eq_u32 s{sTYPE}, 0")
        A(f"s_cselect_b64 s[{dW}:{dW+1}], s[{pWQKV}:{pWQKV+1}], s[{pW1}:{pW1+1}]")
        A(f"s_mov_b32 s{dW+2}, 1409024")
        A(f"s_cmov_b32 s{dW+2}, 1572864")
        A(f"s_mov_b32 s{dW+3}, 0x20000")
        self.stamp(0, real=True)
        self.stamp(1)

        def stage(s):
            slot = s % 3
            A(f"s_lshl_b32 s{sKX}, s{sKS}, 7")
            A(f"s_add_u32 s{sKX}, s{sKX}, s{sXB}")
            A(f"s_mul_i32 s{sKW}, s{sKS}, s{sSTR}")
            A(f"s_add_u32 s{sKS}, s{sKS}, 1")
            A(f"s_and_b32 s{sKS}, s{sKS}, 7")
            for n in range(4):
                A(f"s_add_u32 m0, s{sLX}, {slot * 16384 + n * 1024}")
                A(f"buffer_load_dwordx4 v{vX[n]}, s[{dX}:{dX+3}], s{sKX} offen lds")
            for rg in range(2):
                for u in range(3):
                    A(f"s_add_u32 m0, s{sLW}, {slot * 24576 + u * 2048 + rg * 1024}")
                    A(f"buffer_load_dwordx4 v{vW[3*rg+u]}, s[{dW}:{dW+3}], s{sKW} offen lds")

        stage(0)
        stage(1)
        srd(A, dW2, pW2, 1409024)
        srd(A, dWO, pWO, 524288)
        A(f"s_mul_i32 s80, s{sRT}, {RT_STRIDE}")
        A(f"s_add_u32 s{dAH}, s{pWS}, s80")
        A(f"s_addc_u32 s{dAH+1}, s{pWS+1}, 0")
        A(f"s_mov_b32 s{dAH+2}, {NSTEP_H * 2048}")
        A(f"s_mov_b32 s{dAH+3}, 0x20000")
        A(f"s_add_u32 s{dAO}, s{dAH}, {NSTEP_H * 2048}")
        A(f"s_addc_u32 s{dAO+1}, s{dAH+1}, 0")
        A(f"s_mov_b32 s{dAO+2}, {32 * 2048}")
        A(f"s_mov_b32 s{dAO+3}, 0x20000")
        srd(A, dOUT, pOUT, 2097152)
        srd(A, dB2, pB2, 1024)
        srd(A, dFL, pWS, WS_END)
        srd(A, dDBG, pDBG, 256)
        A(f"v_and_b32 v{vF}, 15, v0")
        A(f"v_lshlrev_b32 v{vF}, 2, v{vF}")
        A(f"s_lshl_b32 s{sFH}, s{sRT}, 7")
        A(f"s_add_u32 s{sFH}, s{sFH}, {WS_FLAG}")
        A(f"s_add_u32 s{sFO}, s{sFH}, {32 * 128}")
        A(f"s_lshl_b32 s80, s{sCT}, 7")
        A(f"v_lshl_add_u32 v{vW2a}, v{vrow}, 10, v{vgsw}")
        A(f"v_add_u32 v{vW2a}, s80, v{vW2a}")
        A(f"v_add_u32 v{vW2b}, {8192 - 1024}, v{vW2a}")
        A(f"v_lshrrev_b32 v{t0}, 5, v0")
        A(f"v_bfe_u32 v{t1}, v0, 2, 2")
        A(f"v_lshlrev_b32 v{t2}, 9, v{t0}")
        A(f"v_lshl_add_u32 v{t2}, v{t1}, 7, v{t2}")
        A(f"v_lshrrev_b32 v{t1}, 1, v{t1}")
        A(f"s_and_b32 s80, s{sW}, 1")
        A(f"v_xor_b32 v{t1}, s80, v{t1}")
        A(f"v_lshl_add_u32 v{t2}, v{t1}, 6, v{t2}")
        A(f"v_bfe_u32 v{t1}, v0, 4, 1")
        A(f"v_lshl_add_u32 v{t2}, v{t1}, 5, v{t2}")
        A(f"v_and_b32 v{t1}, 3, v0")
        A(f"v_lshl_add_u32 v{t2}, v{t1}, 3, v{t2}")
        A(f"v_xor_b32 v{t3}, 64, v{t2}")
        A(f"v_add_u32 v{vtr+0}, s{sLX}, v{t2}")
        A(f"v_add_u32 v{vtr+1}, s{sLX}, v{t3}")
        A(f"v_add_u32 v{vtr+2}, s{sLW}, v{t2}")
        A(f"v_add_u32 v{vtr+3}, s{sLW}, v{t3}")
        A(f"v_add_u32 v{vtr+4}, 49152, v{vtr+2}")
        A(f"v_add_u32 v{vtr+5}, 49152, v{vtr+3}")
        A(f"s_lshr_b32 s81, s{sW}, 1")
        A("s_lshl_b32 s82, s81, 10")
        A(f"v_lshl_add_u32 v{vA0}, v0, 4, s82")
        A(f"v_xor_b32 v{vA1}, 0x400, v{vA0}")
        A(f"s_lshl1_add_u32 s81, s{sRT}, s81")
        A("s_lshl_b32 s81, s81, 15")
        A(f"s_lshl1_add_u32 s80, s{sCT}, s80")
        A(f"s_lshl_b32 s{sT}, s80, 6")
        A(f"s_add_u32 s81, s81, s{sT}")
        A(f"v_and_b32 v{t1}, 31, v0")
        A(f"v_lshl_add_u32 v{vO}, v{t1}, 10, s81")
        if cfg.rot2 > 1:
            A(f"s_add_u32 s80, s{sRT}, s{sCT}")
            A(f"s_and_b32 s80, s80, {cfg.rot2 - 1}")
            A(f"s_mul_i32 s80, s80, {4 * (22 // cfg.rot2)}")
            A(f"s_add_u32 s80, s80, s{sW}")
        else:
            A(f"s_mov_b32 s80, s{sW}")
        A(f"s_lshl_b32 s{sS2}, s80, 14")
        A(f"s_lshl_b32 s{sSA}, s80, 11")

        for s in range(6):
            A("s_waitcnt vmcnt(10)")
            A("s_barrier")
            if s == 0:
                self.stamp(2)
            if s == 5:
                A(f"buffer_load_dword v{vP}, off, s[{dDBG}:{dDBG+3}], 0 sc1")
            stage(s + 2)
        A("s_waitcnt vmcnt(10)")
        A(f"v_readfirstlane_b32 s81, v{vP}")
        A("s_cmp_lg_u32 s81, 0")
        A("s_cbranch_scc1 L_clr_ok")
        A(f"s_mov_b32 s80, {SPIN}")
        A("L_clr:")
        A(f"buffer_load_dword v{vP}, off, s[{dDBG}:{dDBG+3}], 0 sc1")
        A("s_sub_u32 s80, s80, 1")
        A("s_cbranch_scc1 L_clr_ok")
        A("s_waitcnt vmcnt(0)")
        A(f"v_readfirstlane_b32 s81, v{vP}")
        A("s_cmp_lg_u32 s81, 0")
        A("s_cbranch_scc0 L_clr")
        A("L_clr_ok:")
        A("s_barrier")

        def slots_of(k):
            return [("X", k, 0), ("X", k, 1), ("W", k, 0), ("W", k, 1), ("W", k, 2)]
        free = [("W", 3, 0), ("W", 3, 1), ("W", 3, 2)] + slots_of(2)
        where = {}

        def lds_imm(sl):
            reg, k, idx = sl
            return k * 16384 + idx * 2048 if reg == "X" else k * 24576 + idx * 2048

        def issue_w2(n):
            sl = free.pop(0)
            where[n] = sl
            base = sLX if sl[0] == "X" else sLW
            d = dW2 if n < 22 else dWO
            if n == 22:
                A(f"s_lshl_b32 s{sS2}, s{sW}, 14")
            A(f"s_add_u32 m0, s{base}, {lds_imm(sl)}")
            A(f"buffer_load_dwordx4 v{vW2a}, s[{d}:{d+3}], s{sS2} offen lds")
            A(f"buffer_load_dwordx4 v{vW2b}, s[{d}:{d+3}], s{sS2} offen offset:1024 lds")
            A(f"s_add_u32 s{sS2}, s{sS2}, 0x10000")
            if cfg.rot2 > 1 and n < 21:
                A(f"s_cmp_ge_u32 s{sS2}, {88 << 14}")
                A(f"s_cselect_b32 s80, {88 << 14}, 0")
                A(f"s_sub_u32 s{sS2}, s{sS2}, s80")

        def tr_reads(n, dst):
            reg, k, idx = where[n]
            if reg == "X":
                a, imm = vtr, lds_imm(where[n])
            elif k < 2:
                a, imm = vtr + 2, lds_imm(where[n])
            else:
                a, imm = vtr + 4, lds_imm(where[n]) - 49152
            return [f"ds_read_b64_tr_b16 {vr(dst + 4 * nt + 2 * j, 2)}, v{a + nt} offset:{imm + 1024 * j}"
                    for nt in range(2) for j in range(2)]

        for n in range(4):
            issue_w2(n)
        A("s_waitcnt vmcnt(8)")
        A("s_barrier")
        self.stamp(3)
        free.extend(slots_of(0))
        pending = None
        for n in range(4, 30):
            if pending is not None:
                A("s_waitcnt lgkmcnt(0)")
                free.append(pending); pending = None
            if not free:
                A(f"v_mov_b32 v{t0}, {L_FL}")
                self.lds_spin(t0, 0, 4, bwork, [])
                free.extend(slots_of(1))
            issue_w2(n)
            if n - 4 < NREG:
                A("s_waitcnt vmcnt(8)")
                for x in tr_reads(n - 4, breg + 8 * (n - 4)):
                    A(x)
                pending = where[n - 4]
        xr, br = acc + 16, acc + 24
        A(f"v_lshrrev_b32 v{t0}, 5, v0")
        A(f"v_lshl_add_u32 v{t1}, v{t0}, 3, v{vO}")
        A(f"v_lshl_add_u32 v{t2}, v{t0}, 3, s{sT}")
        A(f"v_lshl_add_u32 v{vO}, v{t0}, 4, v{vO}")
        for j in range(4):
            A(f"buffer_load_dwordx2 {vr(xr + 2 * j, 2)}, v{t1}, s[{dX}:{dX+3}], 0 offen offset:{16 * j}")
        for j in range(4):
            A(f"buffer_load_dwordx2 {vr(br + 2 * j, 2)}, v{t2}, s[{dB2}:{dB2+3}], 0 offen offset:{16 * j}")
        self.stamp(4)
        self.wait_flags(dFL, sFH, vF, vP)
        self.stamp(5)

        def a_loads(n):
            b = aring + 8 * (n % (R + 1))
            d = dAH if n < 22 else dAO
            out = []
            if n == 22:
                out.append(f"s_lshl_b32 s{sSA}, s{sW}, 11")
            out.append(f"buffer_load_dwordx4 {vr(b, 4)}, v{vA0}, s[{d}:{d+3}], s{sSA} offen sc1")
            out.append(f"buffer_load_dwordx4 {vr(b + 4, 4)}, v{vA1}, s[{d}:{d+3}], s{sSA} offen sc1")
            out.append(f"s_add_u32 s{sSA}, s{sSA}, 0x2000")
            if cfg.rot2 > 1 and n < 21:
                out.append(f"s_cmp_ge_u32 s{sSA}, {88 << 11}")
                out.append(f"s_cselect_b32 s80, {88 << 11}, 0")
                out.append(f"s_sub_u32 s{sSA}, s{sSA}, s80")
            return out

        for n in range(R):
            for x in a_loads(n):
                A(x)
        A(f"s_waitcnt vmcnt({2 * R})")
        A("s_mov_b32 s82, 0xffff0000")
        for q in range(8):
            A(f"v_lshlrev_b32 v{acc + 2 * q}, 16, v{xr + q}")
            A(f"v_and_b32 v{acc + 2 * q + 1}, s82, v{xr + q}")
            A(f"v_lshlrev_b32 v{acc + 32 + 2 * q}, 16, v{br + q}")
            A(f"v_and_b32 v{acc + 33 + 2 * q}, s82, v{br + q}")
        for q in range(8):
            A(f"v_pk_add_f32 {vr(acc + 2 * q, 2)}, {vr(acc + 2 * q, 2)}, {vr(acc + 32 + 2 * q, 2)}")

        for n in range(30):
            nxt = n + R
            if nxt == 22:
                self.stamp(6)
                self.wait_flags(dFL, sFO, vF, vP)
                self.stamp(7)
            loads = a_loads(nxt) if nxt < 30 else []
            for x in loads:
                A(x)
            left = min(R, 29 - n)
            bsrc = breg + 8 * n if n < NREG else bwork + 8 * (n % 2)
            A(f"s_waitcnt vmcnt({2 * left})" + (" lgkmcnt(0)" if n >= NREG else ""))
            b = aring + 8 * (n % (R + 1))
            mf = []
            for tt in range(2):
                for nt in range(2):
                    blk = acc + 16 * (nt + 2 * tt)
                    c = "0" if (n == 0 and blk != acc) else vr(blk, 16)
                    mf.append(f"v_mfma_f32_32x32x16_bf16 {vr(blk, 16)}, {vr(bsrc + 4 * nt, 4)}, {vr(b + 4 * tt, 4)}, {c}")
            if NREG <= n + 1 < 30:
                mf = interleave(mf, (tr_reads(n + 1, bwork + 8 * ((n + 1) % 2)), 0, 1))
            for x in mf:
                A(x)
        self.stamp(8)
        vr0 = t0
        A(f"v_lshl_add_u32 v{vr0}, v0, 4, s{sLX}")
        for blk in range(1, 4):
            for q in range(4):
                A(f"ds_write_b128 v{vr0}, {vr(acc + 16 * blk + 4 * q, 4)} offset:{(blk - 1) * 16384 + q * 1024}")
        for blk in range(1, 4):
            A(f"v_xor_b32 v{t0 + blk}, {blk << 12}, v{vr0}")
        A("s_waitcnt lgkmcnt(0)")
        A("s_barrier")
        for q in range(4):
            for blk in range(1, 4):
                A(f"ds_read_b128 {vr(breg + 16 * blk + 4 * q, 4)}, v{t0 + blk} offset:{(blk - 1) * 16384 + q * 1024}")
        pk = breg
        for q in range(4):
            A(f"s_waitcnt lgkmcnt({9 - 3 * q})")
            for blk in range(1, 4):
                for d in range(2):
                    a = acc + 4 * q + 2 * d
                    A(f"v_pk_add_f32 {vr(a, 2)}, {vr(a, 2)}, {vr(breg + 16 * blk + 4 * q + 2 * d, 2)}")
            for d in range(2):
                A(f"v_cvt_pk_bf16_f32 v{pk + 2 * q + d}, v{acc + 4 * q + 2 * d}, v{acc + 4 * q + 2 * d + 1}")
            if q % 2 == 1:
                p = pk + 2 * (q - 1)
                A(f"v_permlane32_swap_b32 v{p}, v{p + 2}")
                A(f"v_permlane32_swap_b32 v{p + 1}, v{p + 3}")
                A(f"buffer_store_dwordx4 {vr(p, 4)}, v{vO}, s[{dOUT}:{dOUT+3}], 0 offen offset:{16 * (q - 1)}")
        if cfg.stamps:
            A("s_waitcnt vmcnt(0)")
            self.stamp(9)
            self.stamp(10, real=True)
            self.stamp_out()
        A("s_endpgm")

    def cwave(self):
        A, cfg = self.A, self.cfg
        dWS, dB1, dDBG = 32, 36, 40
        self.dWS = dWS
        sR, sC, sMASK, sEPS, sL2E, sA2, sFL, sPERM, sHI = 84, 85, 86, 88, 90, 92, 93, 94, 44
        self.sc = dict(sR=sR, sC=sC, sMASK=sMASK, sEPS=sEPS, sL2E=sL2E, sA2=sA2, sFL=sFL, sPERM=sPERM, sHI=sHI)
        al = Alloc(1, 254)
        V = self.V = {}
        V["acc"] = al(96, 4)
        V["fr"] = al(40, 4)
        V["cs"] = al(12, 4)
        V["sel"] = al(4, 4)
        V["aug"] = al(20, 4)
        V["perm"] = al(4, 4)
        V["ones"] = al(4, 4)
        V["rT"] = al(32, 4)
        V["xa"] = al(8)
        V["wa"] = al(4)
        V["st"] = al(4)
        V["t"] = al(8, 4)
        V["r"] = al(4, 2)
        V["b1"] = al(3)
        V["tok"] = al(2)
        V["l16"] = al(1)
        V["one"] = al(1)
        V["fl"] = al(1)
        t = V["t"]
        A("L_C:")
        if cfg.code_pf:
            A("s_getpc_b64 s[80:81]")
            A("L_pc:")
            A(f"s_sub_u32 s80, s80, L_pc-{NAME}")
            A("s_subb_u32 s81, s81, 0")
            A("s_lshr_b32 s82, s2, 3")
            A(f"s_lshl2_add_u32 s82, s82, s{sW}")
            A(f"v_and_b32 v{t}, 3, v0")
            A(f"v_lshl_add_u32 v{t}, v{t}, 7, s82")
            A(f"v_lshlrev_b32 v{t}, 7, v{t}")
            A(f"v_min_u32 v{t}, L_end-{NAME}-4, v{t}")
            A("s_mov_b64 exec, 15")
            A(f"global_load_dword v{V['rT']}, v{t}, s[80:81]")
            A("s_mov_b64 exec, -1")
        A(f"s_lshr_b32 s{sR}, s{sW}, 1")
        A(f"s_and_b32 s{sC}, s{sW}, 1")
        A(f"s_mov_b32 s{sMASK}, 0xffff0000")
        A(f"s_mov_b32 s{sEPS}, 0x358637bd")
        A(f"s_mov_b32 s{sEPS+1}, 0x358637bd")
        A(f"s_mov_b32 s{sL2E}, 0x3fb8aa3b")
        A(f"s_mov_b32 s{sL2E+1}, 0x3fb8aa3b")
        A(f"s_mov_b32 s{sPERM}, 0x07060302")
        A(f"s_mov_b32 s{sHI}, 0xffff0000")
        A(f"s_mov_b32 s{sHI+1}, 0xffff0000")
        A(f"v_and_b32 v{t}, 31, v0")
        A(f"v_lshrrev_b32 v{t+1}, 5, v0")
        A(f"s_lshl_b32 s80, s{sW}, 5")
        A(f"v_add_u32 v{t+2}, s80, v{t}")
        A(f"v_lshlrev_b32 v{V['tok']}, 2, v{t+2}")
        A(f"v_add_u32 v{V['tok']}, {L_MISC}, v{V['tok']}")
        A(f"v_xor_b32 v{V['tok']+1}, 0x80, v{V['tok']}")
        A(f"v_bfe_u32 v{t+3}, v0, 1, 3")
        A(f"v_xor_b32 v{t+3}, v{t+3}, v{t+1}")
        A(f"s_lshl_b32 s80, s{sR}, 1")
        A(f"v_xor_b32 v{t+3}, s80, v{t+3}")
        A(f"v_lshlrev_b32 v{t+3}, 4, v{t+3}")
        A(f"v_lshl_add_u32 v{V['xa']}, v{t+2}, 7, v{t+3}")
        for p in range(1, 4):
            A(f"v_xor_b32 v{V['xa']+2*p}, {32 * p}, v{V['xa']}")
        for p in range(4):
            A(f"v_xor_b32 v{V['xa']+2*p+1}, 0x1000, v{V['xa']+2*p}")
        A(f"v_bfe_u32 v{t+2}, v0, 2, 2")
        A(f"v_lshlrev_b32 v{t+3}, 10, v{t+1}")
        A(f"v_lshl_add_u32 v{t+3}, v{t+2}, 7, v{t+3}")
        A(f"v_lshrrev_b32 v{t+2}, 1, v{t+2}")
        A(f"v_xor_b32 v{t+2}, s{sC}, v{t+2}")
        A(f"v_lshl_add_u32 v{t+3}, v{t+2}, 6, v{t+3}")
        A(f"v_bfe_u32 v{t+2}, v0, 4, 1")
        A(f"v_lshl_add_u32 v{t+3}, v{t+2}, 5, v{t+3}")
        A(f"v_and_b32 v{t+2}, 3, v0")
        A(f"v_lshl_add_u32 v{t+3}, v{t+2}, 3, v{t+3}")
        A(f"s_mul_i32 s80, s{sR}, 6144")
        A(f"s_sub_u32 s81, {L_W}, s80")
        A(f"s_add_u32 s80, s80, {L_W}")
        A(f"v_add_u32 v{V['wa']}, s80, v{t+3}")
        A(f"v_add_u32 v{V['wa']+1}, s81, v{t+3}")
        A(f"v_add_u32 v{V['wa']+2}, 49152, v{V['wa']}")
        A(f"v_add_u32 v{V['wa']+3}, 49152, v{V['wa']+1}")
        A(f"v_lshrrev_b32 v{t+2}, 4, v0")
        A(f"v_bfe_u32 v{t+3}, v0, 2, 2")
        A(f"v_mov_b32 v{V['ones']}, 0x3f803f80")
        A(f"v_cmp_eq_u32 vcc, v{t+2}, v{t+3}")
        for q in range(1, 4):
            A(f"v_mov_b32 v{V['ones']+q}, v{V['ones']}")
        for q in range(4):
            A(f"v_cndmask_b32 v{V['sel']+q}, 0, v{V['ones']}, vcc")
        for q in range(5):
            A(f"v_mov_b32 v{V['aug']+4*q+2}, 0")
            A(f"v_mov_b32 v{V['aug']+4*q+3}, 0")
        for q in range(4):
            A(f"v_mov_b32 v{V['st']+q}, 0")
        A(f"v_lshlrev_b32 v{V['l16']}, 4, v0")
        A(f"v_mov_b32 v{V['one']}, 1")
        A(f"v_mov_b32 v{V['fl']}, {L_FL}")
        A(f"v_lshlrev_b32 v{t+2}, 2, v0")
        A(f"v_add_u32 v{t+2}, {L_FL}, v{t+2}")
        A(f"ds_write_b32 v{t+2}, v{V['st']}")
        A("s_waitcnt lgkmcnt(0)")
        self.stamp(0, real=True)
        self.stamp(1)
        srd(A, dWS, pWS, WS_END)
        A(f"s_lshl1_add_u32 s80, s{sI}, s{sR}")
        A(f"s_mul_i32 s{sA2}, s80, {RT_STRIDE}")
        A(f"s_lshl_b32 s{sFL}, s80, 5")
        A(f"s_lshl1_add_u32 s81, s{sG}, s{sC}")
        A(f"s_add_u32 s{sFL}, s{sFL}, s81")
        A(f"s_lshl_b32 s{sFL}, s{sFL}, 2")
        A(f"s_add_u32 s{sFL}, s{sFL}, {WS_FLAG}")
        A(f"s_lshl3_add_u32 s80, s2, s{sWAVE}")
        A("s_cmp_eq_u32 s80, 1")
        A("s_cbranch_scc0 L_noclr")
        srd(A, dDBG, pDBG, 256)
        z = V["rT"] + 4
        for q in range(4):
            A(f"v_mov_b32 v{z+q}, 0")
        A(f"s_mov_b32 s80, {WS_FLAG}")
        for q in range(10):
            A(f"buffer_store_dwordx4 {vr(z, 4)}, v{V['l16']}, s[{dWS}:{dWS+3}], s80 offen sc1")
            A("s_add_u32 s80, s80, 0x400")
        A("s_waitcnt vmcnt(0)")
        A("s_mov_b32 s80, 0")
        self.set_flag(dDBG, 80, V["one"])
        A("L_noclr:")
        A(f"s_cmp_eq_u32 s{sTYPE}, 0")
        A("s_cbranch_scc1 L_attn")
        srd(A, dB1, pB1, 2752)
        A(f"s_add_u32 s80, s83, s{sC}")
        A("s_lshl_b32 s81, s80, 12")
        A(f"s_add_u32 s{sA2}, s{sA2}, s81")
        A("s_lshl_b32 s80, s80, 6")
        A(f"v_lshlrev_b32 v{t+2}, 1, v{t}")
        A(f"v_lshl_add_u32 v{t+2}, v{t+1}, 20, v{t+2}")
        for u in range(3):
            A(f"buffer_load_ushort v{V['b1']+u}, v{t+2}, s[{dB1}:{dB1+3}], s80 offen offset:{128 * u}")
        self.kloop(False)
        self.mlp_tail()
        A("L_attn:")
        for u in range(3):
            A(f"v_mov_b32 v{V['b1']+u}, 0")
        A(f"v_bfe_u32 v{t+2}, v0, 2, 1")
        A(f"v_xor_b32 v{t+2}, v{t+2}, v{t+1}")
        A(f"v_bfe_u32 v{t+3}, v0, 4, 1")
        A(f"v_or_b32 v{t+2}, v{t+2}, v{t+3}")
        A(f"v_bfe_u32 v{t+3}, v0, 3, 1")
        A(f"v_lshl_add_u32 v{t+2}, v{t+2}, 1, v{t+3}")
        A(f"v_bfe_u32 v{t+3}, v0, 1, 1")
        A(f"v_lshl_add_u32 v{t+2}, v{t+2}, 1, v{t+3}")
        A(f"v_and_b32 v{t+3}, 1, v0")
        A(f"v_lshlrev_b32 v{t+3}, 4, v{t+3}")
        A(f"v_mov_b32 v{t+4}, 0x3f80")
        A(f"v_lshlrev_b32 v{t+3}, v{t+3}, v{t+4}")
        for q in range(4):
            A(f"v_cmp_eq_u32 vcc, {q}, v{t+2}")
            A(f"v_cndmask_b32 v{V['perm']+q}, 0, v{t+3}, vcc")
        self.kloop(True)
        self.attn_tail()

    def kloop(self, attn):
        A, V, sc = self.A, self.V, self.sc
        acc, fr, cs, st, t = V["acc"], V["fr"], V["cs"], V["st"], V["t"]

        def reads(n):
            s, p = divmod(n, 4)
            slot = s % 3
            f = fr + 20 * (n % 2)
            wa = V["wa"] + (p & 1) + (2 if slot == 2 else 0)
            wi = (0 if slot == 2 else slot * 24576) + p * 6144
            x = [f"ds_read_b128 {vr(f + 4 * a, 4)}, v{V['xa'] + 2 * p + a} offset:{slot * 16384}" for a in range(2)]
            w = [f"ds_read_b64_tr_b16 {vr(f + 8 + 4 * u + 2 * j, 2)}, v{wa} offset:{wi + u * 2048 + j * 512}"
                 for u in range(3) for j in range(2)]
            return [x[0]] + w[:2] + [x[1]] + w[2:]

        def mfma(dst, xf, wf, u, c):
            a, b = (xf, wf) if (attn and u < 2) else (wf, xf)
            return f"v_mfma_f32_32x32x16_bf16 {vr(dst, 16)}, {vr(a, 4)}, {vr(b, 4)}, {c}"
        self.mfma1 = mfma

        A("s_barrier")
        self.stamp(2)
        for x in reads(0):
            A(x)
        for n in range(32):
            s, p = divmod(n, 4)
            f = fr + 20 * (n % 2)
            A("s_waitcnt lgkmcnt(0)")
            if p == 3 and s < 7:
                A("s_barrier")
            prim = []
            for u in range(3):
                for a in range(2):
                    d = acc + 16 * (2 * u + a)
                    prim.append(mfma(d, f + 4 * a, f + 8 + 4 * u, u, "0" if n == 0 else vr(d, 16)))
                if p % 2 == 0:
                    d = cs + 4 * u
                    prim[-1] += f"\nv_mfma_f32_16x16x32_bf16 {vr(d, 4)}, {vr(V['sel'], 4)}, {vr(f + 8 + 4 * u, 4)}, " + ("0" if n == 0 else vr(d, 4))
            va = []
            for q in range(4):
                a, b = t + 2 * (q % 2), t + 2 * (q % 2) + 1
                va.append(f"v_lshlrev_b32 v{a}, 16, v{f + q}\nv_and_b32 v{b}, s{sc['sMASK']}, v{f + q}")
                va.append(f"v_add_f32 v{st}, v{st}, v{a}\nv_add_f32 v{st+1}, v{st+1}, v{b}")
                va.append(f"v_fmac_f32 v{st+2}, v{a}, v{a}\nv_fmac_f32 v{st+3}, v{b}, v{b}")
            if n < 31:
                seq = interleave(prim, (reads(n + 1), 0, 3), (va, 0, 5))
            else:
                seq = interleave(prim, (va, 0, 2), (self.stats_final(), 3, 5))
            for x in seq:
                A(x)
        self.stamp(3)
        tok = V["tok"]
        ms, r0, r1 = V["aug"] + 1, V["r"], V["r"] + 2
        A(f"ds_write_b32 v{tok}, v{r0} offset:0")
        A(f"ds_write_b32 v{tok}, v{ms} offset:512")
        A(f"s_mul_i32 s80, s{sW}, 768")
        A(f"s_add_u32 s80, s80, {L_CS}")
        A(f"v_lshl_add_u32 v{t}, v0, 2, s80")
        A(f"s_xor_b32 s81, s{sW}, 2")
        A("s_mul_i32 s81, s81, 768")
        A(f"s_add_u32 s81, s81, {L_CS}")
        A(f"v_lshl_add_u32 v{t+1}, v0, 2, s81")
        for u in range(3):
            A(f"ds_write_b32 v{t}, v{cs + 4 * u} offset:{256 * u}")
        A(f"s_lshl_b32 s80, s{sW}, 2")
        A(f"v_add_u32 v{t+2}, s80, v{V['fl']}")
        A(f"ds_write_b32 v{t+2}, v{V['one']}")
        rd = [f"ds_read_b32 v{cs + 4 * u + 1}, v{t+1} offset:{256 * u}" for u in range(3)]
        rd.append(f"ds_read_b32 v{V['aug'] + 5}, v{tok+1} offset:512")
        rd.append(f"ds_read_b32 v{r1}, v{tok+1} offset:0")
        if attn:
            A(f"v_lshrrev_b32 v{t+2}, 5, v0")
            A(f"s_lshl_b32 s80, s{sW}, 7")
            A(f"s_add_u32 s80, s80, {L_R}")
            A(f"v_lshl_add_u32 v{t+2}, v{t+2}, 4, s80")
            A(f"v_xor_b32 v{t+3}, 0x80, v{t+2}")
            rd += [f"ds_read_b128 {vr(V['rT'] + 16 * a + 4 * j, 4)}, v{t + 2 + a} offset:{32 * j}" for a in range(2) for j in range(4)]
        A("s_waitcnt vmcnt(0)")
        self.lds_spin(V["fl"], 0, 4, t + 4, rd)
        for a in range(2):
            A(f"v_perm_b32 v{V['aug'] + 4 * a}, v{V['aug'] + 4 * a + 1}, v{V['aug'] + 4 * a + 1}, s{sc['sPERM'] + 1}")
        for u in range(3):
            A(f"v_add_f32 v{cs + 4 * u}, v{cs + 4 * u}, v{cs + 4 * u + 1}")
        for u in range(3):
            A(f"v_and_b32 v{cs + 4 * u + 1}, s{sc['sMASK']}, v{cs + 4 * u}")
        for u in range(3):
            A(f"v_sub_f32 v{cs + 4 * u + 1}, v{cs + 4 * u}, v{cs + 4 * u + 1}")
        for u in range(3):
            A(f"v_perm_b32 v{V['aug'] + 8 + 4 * u}, v{cs + 4 * u + 1}, v{cs + 4 * u}, s{sc['sPERM']}")
            A(f"v_and_b32 v{cs + 4 * u + 2}, s{sc['sMASK']}, v{cs + 4 * u + 1}")
        for u in range(3):
            A(f"v_sub_f32 v{cs + 4 * u + 2}, v{cs + 4 * u + 1}, v{cs + 4 * u + 2}")
        for u in range(3):
            A(f"v_lshrrev_b32 v{cs + 4 * u + 2}, 16, v{cs + 4 * u + 2}")
        for u in range(3):
            A(f"v_lshl_or_b32 v{V['aug'] + 9 + 4 * u}, v{V['b1'] + u}, 16, v{cs + 4 * u + 2}")
        for u in range(3):
            for a in range(2):
                d = acc + 16 * (2 * u + a)
                A(mfma(d, V["aug"] + 4 * a, V["aug"] + 8 + 4 * u, u, vr(d, 16)))
        self.stamp(4)

    def stats_final(self):
        V, sc = self.V, self.sc
        st, t = V["st"], V["t"]
        ms, r0 = V["aug"] + 1, V["r"]
        return [
            f"v_add_f32 v{st}, v{st}, v{st+1}\nv_add_f32 v{st+2}, v{st+2}, v{st+3}",
            f"v_mov_b32 v{st+1}, v{st}\nv_mov_b32 v{st+3}, v{st+2}",
            f"s_mov_b32 s{sc['sPERM']+1}, 0x01000100",
            f"v_permlane32_swap_b32 v{st}, v{st+1}\nv_permlane32_swap_b32 v{st+2}, v{st+3}",
            f"v_add_f32 v{st}, v{st}, v{st+1}\nv_add_f32 v{st+2}, v{st+2}, v{st+3}",
            f"v_mul_f32 v{st}, 0xbb000000, v{st}",
            f"v_mul_f32 v{st+2}, 0x3b000000, v{st+2}",
            f"v_fma_f32 v{st+2}, -v{st}, v{st}, v{st+2}",
            f"v_max_f32 v{st+2}, 0, v{st+2}",
            f"v_cvt_pk_bf16_f32 v{t}, v{st+2}, v{st+2}",
            f"v_and_b32 v{t}, s{sc['sMASK']}, v{t}",
            f"v_add_f32 v{t}, 0x3727c5ac, v{t}",
            f"v_cvt_pk_bf16_f32 v{t}, v{t}, v{t}",
            f"v_and_b32 v{t}, s{sc['sMASK']}, v{t}",
            f"v_sqrt_f32 v{t}, v{t}",
            f"v_cvt_pk_bf16_f32 v{ms}, v{st}, v{t}",
            f"v_and_b32 v{t}, s{sc['sMASK']}, v{ms}",
            f"v_rcp_f32 v{r0}, v{t}",
        ]

    def mlp_tail(self):
        A, V, sc = self.A, self.V, self.sc
        acc, t, dWS = V["acc"], V["t"], self.dWS
        A(f"s_lshl_b32 s80, s{sc['sC']}, 10")
        A(f"v_add_u32 v{t}, s80, v{V['l16']}")
        A(f"v_xor_b32 v{t+1}, 0x400, v{t}")
        for u in range(3):
            if u == 2:
                A(f"s_cmp_ge_u32 s{sG}, 3")
                A(f"s_cselect_b32 s80, s{sc['sC']}, 0")
                A("s_cmp_eq_u32 s80, 1")
                A("s_cbranch_scc1 L_mlp_done")
            for a in range(2):
                d = acc + 16 * (2 * u + a)
                pk = V["fr"] + 8 * a
                for q in range(8):
                    A(f"v_pk_mul_f32 {vr(d + 2 * q, 2)}, {vr(d + 2 * q, 2)}, {vr(V['r'] + 2 * a, 2)} op_sel_hi:[1,0]")
                for q in range(16):
                    A(f"v_max_f32 v{d + q}, 0, v{d + q}")
                for q in range(8):
                    A(f"v_pk_mul_f32 {vr(d + 2 * q, 2)}, {vr(d + 2 * q, 2)}, {vr(d + 2 * q, 2)}")
                for s in range(2):
                    for q in range(4 * s, 4 * s + 4):
                        A(f"v_cvt_pk_bf16_f32 v{pk + q}, v{d + 2 * q}, v{d + 2 * q + 1}")
                    A(f"buffer_store_dwordx4 {vr(pk + 4 * s, 4)}, v{t + a}, s[{dWS}:{dWS+3}], s{sc['sA2']} offen offset:{2048 * s} sc1")
            A(f"s_add_u32 s{sc['sA2']}, s{sc['sA2']}, 0x2000")
        A("L_mlp_done:")
        self.stamp(5)
        A("s_waitcnt vmcnt(0)")
        self.set_flag(dWS, sc["sFL"], V["one"])
        self.stamp(6)
        self.stamp_out()
        A("s_endpgm")

    def phi(self, d, rsrc, pk, tmp):
        A, sc = self.A, self.sc
        e, l = sr(sc["sEPS"], 2), sr(sc["sL2E"], 2)
        for q in range(8):
            A(f"v_pk_fma_f32 {vr(d + 2 * q, 2)}, {vr(d + 2 * q, 2)}, {rsrc(q)[0]}, {e}{rsrc(q)[1]}")
        for q in range(8):
            A(f"v_pk_mul_f32 {vr(tmp + 2 * q, 2)}, {vr(d + 2 * q, 2)}, {l}")
        for q in range(16):
            A(f"v_exp_f32_e64 v{tmp + q}, v{tmp + q} clamp")
            A(f"v_max_f32_e64 v{d + q}, s{sc['sEPS']}, v{d + q}")
        for q in range(8):
            A(f"v_pk_add_f32 {vr(d + 2 * q, 2)}, {vr(d + 2 * q, 2)}, {vr(tmp + 2 * q, 2)}")
        for q in range(8):
            A(f"v_cvt_pk_bf16_f32 v{pk + q}, v{d + 2 * q}, v{d + 2 * q + 1}")

    def attn_tail(self):
        A, V, sc = self.A, self.V, self.sc
        acc, t, dWS, fr, rT = V["acc"], V["t"], self.dWS, V["fr"], V["rT"]
        sR, sC, sHI = sc["sR"], sc["sC"], sc["sHI"]
        hi = sr(sHI, 2)
        tmp = V["cs"]
        pkf, vf = fr, fr + 16
        for a in range(2):
            self.phi(acc + 16 * a, lambda q: (vr(rT + 16 * a + 2 * q, 2), ""), pkf + 8 * a, tmp)
            d = acc + 32 + 16 * a
            for q in range(8):
                A(f"v_pk_mul_f32 {vr(d + 2 * q, 2)}, {vr(d + 2 * q, 2)}, {vr(rT + 16 * a + 2 * q, 2)}")
            for q in range(8):
                A(f"v_cvt_pk_bf16_f32 v{vf + 8 * a + q}, v{d + 2 * q}, v{d + 2 * q + 1}")
        D1, D2 = acc, acc + 16
        for k in range(4):
            A(f"v_mfma_f32_32x32x16_bf16 {vr(D1, 16)}, {vr(pkf + 4 * k, 4)}, {vr(vf + 4 * k, 4)}, " + ("0" if k == 0 else vr(D1, 16)))
            A(f"v_mfma_f32_32x32x16_bf16 {vr(D2, 16)}, {vr(pkf + 4 * k, 4)}, {vr(V['ones'], 4)}, " + ("0" if k == 0 else vr(D2, 16)))
        sPG, sKV, sZ, sFK = 46, 47, 48, 49
        A(f"s_lshl1_add_u32 s{sPG}, s{sG}, s{sC}")
        A(f"s_lshl4_add_u32 s80, s{sPG}, s{sI}")
        A(f"s_lshl_b32 s{sKV}, s80, 10")
        A(f"s_add_u32 s{sKV}, s{sKV}, {WS_KVP}")
        A(f"s_lshl_b32 s{sZ}, s80, 7")
        A(f"s_add_u32 s{sZ}, s{sZ}, {WS_ZP}")
        A(f"s_lshl_b32 s{sFK}, s{sPG}, 7")
        A(f"s_add_u32 s{sFK}, s{sFK}, {WS_FLAG + 64 * 128}")
        A(f"s_lshl_b32 s80, s{sC}, 12")
        A(f"s_add_u32 s80, s80, {L_KVX}")
        vx, vfl = t, t + 1
        A(f"v_add_u32 v{vx}, s80, v{V['l16']}")
        A(f"s_lshl_b32 s80, s{sC}, 2")
        A(f"v_add_u32 v{vfl}, s80, v{V['fl']}")
        A(f"v_lshrrev_b32 v{t+2}, 4, v0")
        A(f"v_lshlrev_b32 v{t+2}, 5, v{t+2}")
        KV, Z = acc + 32, acc + 40
        for e in range(8):
            A(f"v_cndmask_b32 v{KV + e}, v{D1 + e}, v{D1 + 8 + e}, {hi}")
        for e in range(8):
            A(f"v_cndmask_b32 v{Z + e}, v{D2 + 8 + e}, v{D2 + e}, {hi}")
        A(f"s_cmp_eq_u32 s{sR}, 0")
        A("s_cbranch_scc1 L_kv_r0")
        for q in range(4):
            A(f"ds_write_b128 v{vx}, {vr(KV + 4 * q, 4)} offset:{1024 * q}")
        A(f"ds_write_b32 v{vfl}, v{V['one']} offset:16")
        A("s_branch L_kv_join")
        A("L_kv_r0:")
        o = acc + 48
        self.lds_spin(vfl, 16, 1, t + 4, [f"ds_read_b128 {vr(o + 4 * q, 4)}, v{vx} offset:{1024 * q}" for q in range(4)])
        for q in range(8):
            A(f"v_pk_add_f32 {vr(KV + 2 * q, 2)}, {vr(KV + 2 * q, 2)}, {vr(o + 2 * q, 2)}")
        for q in range(4):
            A(f"v_cvt_pk_bf16_f32 v{o + q}, v{KV + 2 * q}, v{KV + 2 * q + 1}")
        A(f"buffer_store_dwordx4 {vr(o, 4)}, v{V['l16']}, s[{dWS}:{dWS+3}], s{sKV} offen sc1")
        A("s_mov_b32 exec_lo, 0x00010001")
        A("s_mov_b32 exec_hi, 0x00010001")
        for q in range(2):
            A(f"buffer_store_dwordx4 {vr(Z + 4 * q, 4)}, v{t+2}, s[{dWS}:{dWS+3}], s{sZ} offen offset:{16 * q} sc1")
        A("s_mov_b64 exec, -1")
        A("L_kv_join:")
        self.stamp(5)
        pq = fr
        for a in range(2):
            self.phi(acc + 64 + 16 * a, lambda q: (vr(V["r"] + 2 * a, 2), " op_sel_hi:[1,0,1]"), pq + 8 * a, tmp)
        A(f"s_cmp_eq_u32 s{sR}, 0")
        A("s_cbranch_scc0 L_kv_noflag")
        A("s_waitcnt vmcnt(0)")
        A(f"s_lshl2_add_u32 s80, s{sI}, s{sFK}")
        self.set_flag(dWS, 80, V["one"])
        A("L_kv_noflag:")
        self.stamp(6)
        A(f"s_lshl1_add_u32 s80, s{sPG}, s{sR}")
        A(f"s_lshl_b32 s{sKV}, s80, 13")
        A(f"s_add_u32 s{sKV}, s{sKV}, {WS_KVP}")
        A(f"s_add_u32 s50, s{sKV}, 0x1000")
        A(f"s_lshl_b32 s{sZ}, s{sPG}, 11")
        A(f"s_add_u32 s{sZ}, s{sZ}, {WS_ZP}")
        A(f"v_and_b32 v{t+3}, 15, v0")
        A(f"v_lshl_add_u32 v{t+2}, v{t+3}, 7, v{t+2}")
        A(f"s_lshl_b32 s80, s{sR}, 11")
        A(f"v_add_u32 v{vx}, s80, v{vx}")
        A(f"v_xor_b32 v{t+3}, 0x800, v{vx}")
        A(f"s_lshl_b32 s80, s{sW}, 2")
        A(f"v_add_u32 v{vfl}, s80, v{V['fl']}")
        A(f"v_xor_b32 v{V['st']}, 8, v{vfl}")
        A(f"s_lshl_b32 s80, s{sPG}, 12")
        A(f"s_add_u32 s{sc['sA2']}, s{sc['sA2']}, s80")
        A(f"s_add_u32 s{sc['sA2']}, s{sc['sA2']}, {NSTEP_H * 2048}")
        A(f"s_add_u32 s{sc['sFL']}, s{sc['sFL']}, {32 * 128}")
        A(f"s_lshl_b32 s80, s{sC}, 10")
        A(f"v_add_u32 v{V['st']+2}, s80, v{V['l16']}")
        A(f"v_xor_b32 v{V['st']+3}, 0x400, v{V['st']+2}")
        A(f"v_and_b32 v{t+4}, 15, v0")
        A(f"v_lshlrev_b32 v{t+4}, 2, v{t+4}")
        self.wait_flags(dWS, sFK, t + 4, t + 5)
        self.stamp(7)
        part = acc + 48
        for q in range(2):
            A(f"buffer_load_dwordx4 {vr(Z + 4 * q, 4)}, v{t+2}, s[{dWS}:{dWS+3}], s{sZ} offen offset:{16 * q} sc1")
        for p in range(8):
            A(f"buffer_load_dwordx4 {vr(part + 4 * p, 4)}, v{V['l16']}, s[{dWS}:{dWS+3}], s{sKV if p < 4 else 50} offen offset:{1024 * (p % 4)} sc1")
        A("s_waitcnt vmcnt(8)")
        for sh in (8, 4, 2, 1):
            for e in range(8):
                A(f"v_add_f32_dpp v{Z + e}, v{Z + e}, v{Z + e} row_ror:{sh} row_mask:0xf bank_mask:0xf")
        for p in range(8):
            A(f"s_waitcnt vmcnt({7 - p})")
            A(f"v_mfma_f32_32x32x16_bf16 {vr(D1, 16)}, {vr(V['perm'], 4)}, {vr(part + 4 * p, 4)}, " + ("0" if p == 0 else vr(D1, 16)))
        Zb, KVb, op0, op1 = tmp, tmp + 4, tmp + 8, tmp + 12
        for q in range(4):
            A(f"v_cvt_pk_bf16_f32 v{Zb + q}, v{Z + 2 * q}, v{Z + 2 * q + 1}")
        for q in range(2):
            A(f"ds_write_b128 v{vx}, {vr(D1 + 4 * q, 4)} offset:{1024 * q}")
        A(f"ds_write_b32 v{vfl}, v{V['one']} offset:32")
        self.lds_spin(V["st"], 32, 1, t + 4, [f"ds_read_b128 {vr(KV + 4 * q, 4)}, v{t+3} offset:{1024 * q}" for q in range(2)])
        for q in range(4):
            A(f"v_pk_add_f32 {vr(KV + 2 * q, 2)}, {vr(KV + 2 * q, 2)}, {vr(D1 + 2 * q, 2)}")
        for q in range(4):
            A(f"v_cvt_pk_bf16_f32 v{KVb + q}, v{KV + 2 * q}, v{KV + 2 * q + 1}")
        for q in range(4):
            A(f"v_cndmask_b32 v{op0 + q}, v{KVb + q}, v{Zb + q}, {hi}")
        for q in range(4):
            A(f"v_cndmask_b32 v{op1 + q}, v{Zb + q}, v{KVb + q}, {hi}")
        for a in range(2):
            for s in range(2):
                d = acc + 16 * (2 * a + s)
                A(f"v_mfma_f32_32x32x16_bf16 {vr(d, 16)}, {vr(op0 + 4 * s, 4)}, {vr(pq + 8 * a + 4 * s, 4)}, 0")
        ob = fr + 16
        for a in range(2):
            for s in range(2):
                d = acc + 16 * (2 * a + s)
                num, den = (d, d + 8) if s == 0 else (d + 8, d)
                A(f"v_add_f32 v{den}, s{sc['sEPS']}, v{den}")
                A(f"v_rcp_f32 v{den}, v{den}")
                for q in range(4):
                    A(f"v_pk_mul_f32 {vr(num + 2 * q, 2)}, {vr(num + 2 * q, 2)}, {vr(den, 2)} op_sel_hi:[1,0]")
                p = ob + 4 * (2 * a + s)
                for q in range(4):
                    A(f"v_cvt_pk_bf16_f32 v{p + q}, v{num + 2 * q}, v{num + 2 * q + 1}")
                A(f"buffer_store_dwordx4 {vr(p, 4)}, v{V['st'] + 2 + a}, s[{dWS}:{dWS+3}], s{sc['sA2']} offen offset:{2048 * s} sc1")
        self.stamp(8)
        A("s_waitcnt vmcnt(0)")
        self.set_flag(dWS, sc["sFL"], V["one"])
        self.stamp(9)
        self.stamp_out()
        A("s_endpgm")

    def build(self):
        self.entry()
        self.lwave()
        self.cwave()
        self.A("L_end:")
        body = self.A.finish()
        here = os.path.dirname(os.path.abspath(__file__))
        head = open(os.path.join(here, "header.txt")).read()
        return f"""{head}; @launch grid=(256,1,1) block=(512,1,1) lds={LDS_BYTES}
.amdgcn_target "amdgcn-amd-amdhsa--gfx950"
.text
.globl {NAME}
.p2align 8
.type {NAME},@function
{NAME}:
{body}
.section .rodata,"a"
.p2align 6
.amdhsa_kernel {NAME}
  .amdhsa_next_free_vgpr 256
  .amdhsa_next_free_sgpr 102
  .amdhsa_accum_offset 256
  .amdhsa_group_segment_fixed_size 0
  .amdhsa_kernarg_size 88
  .amdhsa_user_sgpr_count 2
  .amdhsa_user_sgpr_kernarg_segment_ptr 1
  .amdhsa_system_sgpr_workgroup_id_x 1
.end_amdhsa_kernel
"""


def generate(**kw):
    cfg = Cfg()
    for k, v in kw.items():
        assert hasattr(cfg, k), k
        setattr(cfg, k, v)
    return Gen(cfg).build()


if __name__ == "__main__":
    out = sys.argv[1]
    kw = {}
    for a in sys.argv[2:]:
        k, v = a.split("=")
        kw[k] = int(v)
    open(out, "w").write(generate(**kw))
```

```python
import sys, os
sys.path.insert(0, os.path.dirname(os.path.abspath(__file__)))
from asmlib import Asm, Alloc, vr, sr, interleave

NAME = "parallel_sum__linear_attn_block__dense_activation_squared_relu__prompt_kernel"

NSTEP_H, NSTEP = 86, 118
RT_STRIDE = NSTEP * 2048
WS_A2 = 0
WS_KVP = 32 * RT_STRIDE
WS_ZP = WS_KVP + 16 * 16 * 1024
WS_FLAG = WS_ZP + 16 * 16 * 128
WS_END = WS_FLAG + 80 * 128
WS_STAMP = 16 << 20

L_X, L_W, L_MISC = 0, 49152, 147456
L_R, L_MS, L_CS, L_FL, L_KVX = L_MISC, L_MISC + 512, L_MISC + 1024, L_MISC + 4096, L_MISC + 8192
LDS_BYTES = 163840

sWAVE, sI, sG, sTYPE, sRT, sCT, sW = 3, 26, 27, 28, 29, 30, 31
pX, pWQKV, pWO, pW1, pB1, pW2, pB2, pOUT, pDBG, pWS = 4, 6, 8, 12, 14, 16, 18, 20, 22, 24
sPOLL = 64
SPIN = 200000


class Cfg:
    stamps = False
    rot1 = 1
    rot2 = 1
    ring = 5
    code_pf = True
    amp = -1
    ampcyc = 0
    psleep = 0
    fstride = 128


def srd(A, d, base, size):
    A(f"s_mov_b32 s{d}, s{base}")
    A(f"s_mov_b32 s{d+1}, s{base+1}")
    A(f"s_mov_b32 s{d+2}, {size}")
    A(f"s_mov_b32 s{d+3}, 0x20000")


class Gen:
    def __init__(self, cfg):
        self.cfg = cfg
        self.A = Asm()
        self.nlabel = 0
        self.vSTAMP = 255
        self.inL = False

    def label(self, p):
        self.nlabel += 1
        return f"L_{p}_{self.nlabel}"

    def stamp(self, k, real=False):
        if self.inL and k == self.cfg.amp:
            self.A(("s_memtime" if self.cfg.ampcyc else "s_memrealtime") + " s[98:99]")
            self.A("s_waitcnt lgkmcnt(0)")
        if not self.cfg.stamps:
            return
        A = self.A
        A(("s_memrealtime" if real else "s_memtime") + " s[100:101]")
        A("s_waitcnt lgkmcnt(0)")
        A(f"v_writelane_b32 v{self.vSTAMP}, s100, {k}")

    def stamp_out(self):
        if not self.cfg.stamps:
            return
        A = self.A
        srd(A, 96, pWS, WS_STAMP + (1 << 20))
        A("s_lshl_b32 s100, s2, 3")
        A(f"s_add_u32 s100, s100, s{sWAVE}")
        A("s_lshl_b32 s100, s100, 8")
        A(f"s_add_u32 s100, s100, {WS_STAMP}")
        A("v_lshlrev_b32 v254, 2, v0")
        A(f"buffer_store_dword v{self.vSTAMP}, v254, s[96:99], s100 offen")

    def wait_flags(self, dSRD, sOff, vOff, vT):
        A = self.A
        lp, ok = self.label("fl"), self.label("flok")
        A(f"s_mov_b32 s80, {SPIN}")
        A(f"{lp}:")
        A(f"buffer_load_dword v{vT}, v{vOff}, s[{dSRD}:{dSRD+3}], s{sOff} offen sc1")
        A("s_sub_u32 s80, s80, 1")
        A(f"s_cbranch_scc1 {ok}")
        A("s_waitcnt vmcnt(0)")
        A(f"v_cmp_eq_u32 vcc, 0, v{vT}")
        A("s_cmp_eq_u64 vcc, 0")
        if self.cfg.psleep:
            A(f"s_cbranch_scc1 {ok}")
            A(f"s_sleep {self.cfg.psleep}")
            A(f"s_branch {lp}")
        else:
            A(f"s_cbranch_scc0 {lp}")
        A(f"{ok}:")

    def set_flag(self, sSRD, sOff, vOne):
        A = self.A
        A("s_mov_b64 exec, 1")
        A(f"buffer_store_dword v{vOne}, off, s[{sSRD}:{sSRD+3}], s{sOff} sc1")
        A("s_mov_b64 exec, -1")

    def lds_spin(self, vAddr, off, n, vT, reads):
        A = self.A
        lp, ok = self.label("ls"), self.label("lsok")
        A(f"s_mov_b32 s80, {SPIN}")
        A(f"{lp}:")
        A({1: "ds_read_b32", 4: "ds_read_b128"}[n] + f" {vr(vT, n)}, v{vAddr} offset:{off}")
        for x in reads:
            A(x)
        A("s_sub_u32 s80, s80, 1")
        A(f"s_cbranch_scc1 {ok}")
        A(f"s_waitcnt lgkmcnt({min(len(reads), 15)})")
        if n == 4:
            A(f"v_and_b32 v{vT}, v{vT}, v{vT+1}")
            A(f"v_and_b32 v{vT+2}, v{vT+2}, v{vT+3}")
            A(f"v_and_b32 v{vT}, v{vT}, v{vT+2}")
        A(f"v_readfirstlane_b32 s81, v{vT}")
        A("s_cmp_eq_u32 s81, 0")
        A("s_waitcnt lgkmcnt(0)")
        A(f"s_cbranch_scc1 {lp}")
        A(f"{ok}:")
        A("s_waitcnt lgkmcnt(0)")

    def entry(self):
        A = self.A
        A("s_cmp_ge_u32 s2, 256")
        A("s_cbranch_scc0 L_go")
        A("s_endpgm")
        A("L_go:")
        if self.cfg.amp >= 0:
            A(("s_memtime" if self.cfg.ampcyc else "s_memrealtime") + " s[96:97]")
        A("s_load_dwordx16 s[4:19], s[0:1], 0")
        A("s_load_dwordx4 s[20:23], s[0:1], 64")
        A("s_load_dwordx2 s[24:25], s[0:1], 80")
        A("v_lshrrev_b32 v1, 6, v0")
        A("v_and_b32 v0, 63, v0")
        A(f"v_readfirstlane_b32 s{sWAVE}, v1")
        A("s_and_b32 s80, s2, 1")
        A("s_bfe_u32 s81, s2, 0x20001")
        A("s_lshr_b32 s82, s2, 3")
        A(f"s_and_b32 s{sI}, s82, 7")
        A(f"s_lshl3_add_u32 s{sI}, s80, s{sI}")
        A(f"s_bfe_u32 s{sTYPE}, s82, 0x10003")
        A(f"s_lshr_b32 s{sG}, s82, 4")
        A(f"s_lshl1_add_u32 s{sG}, s81, s{sG}")
        A(f"s_and_b32 s{sRT}, s82, 3")
        A(f"s_lshl2_add_u32 s{sRT}, s81, s{sRT}")
        A(f"s_lshl4_add_u32 s{sRT}, s80, s{sRT}")
        A(f"s_lshr_b32 s{sCT}, s82, 2")
        A(f"s_and_b32 s{sW}, s{sWAVE}, 3")
        A(f"s_mul_i32 s83, s{sG}, 5")
        A(f"s_min_u32 s84, s{sG}, 3")
        A("s_add_u32 s83, s83, s84")
        if self.cfg.stamps:
            A(f"v_mov_b32 v{self.vSTAMP}, 0")
        A(f"s_cmp_ge_u32 s{sWAVE}, 4")
        A("s_cbranch_scc0 L_C")

    def lwave(self):
        A, cfg = self.A, self.cfg
        self.inL = True
        dX, dW, dW2, dWO, dAH, dAO, dOUT, dB2, dFL, dDBG = 32, 36, 40, 44, 48, 52, 56, 60, 64, 68
        sSTR, sXB, sLX, sLW, sKX, sKW, sKS, sT, sS2, sSA, sFH, sFO = 84, 85, 86, 87, 88, 89, 90, 91, 92, 93, 94, 95
        al = Alloc(1, 254)
        acc = al(64, 4)
        NREG = 12
        breg = al(8 * NREG, 4)
        bwork = al(16, 4)
        R = cfg.ring
        aring = al(8 * (R + 1), 4)
        vtr = al(6)
        vW2a, vW2b, vA0, vA1, vO, vF, vP = al(), al(), al(), al(), al(), al(), al()
        vX = [aring + k for k in range(4)]
        vW = [aring + 4 + k for k in range(6)]
        t0, t1, t2, t3 = [aring + 10 + k for k in range(4)]
        vrow, vgsw = aring + 14, aring + 15

        A(f"v_lshrrev_b32 v{vrow}, 3, v0")
        A(f"v_and_b32 v{t0}, 7, v0")
        A(f"v_lshrrev_b32 v{t1}, 4, v0")
        A(f"v_xor_b32 v{t2}, v{t0}, v{t1}")
        A(f"v_lshlrev_b32 v{t2}, 4, v{t2}")
        A(f"v_lshl_add_u32 v{vX[0]}, v{vrow}, 10, v{t2}")
        A(f"v_xor_b32 v{vX[1]}, 0x2040, v{vX[0]}")
        A(f"v_add_u32 v{vX[2]}, 0x4000, v{vX[0]}")
        A(f"v_add_u32 v{vX[3]}, 0x4000, v{vX[1]}")
        A(f"v_and_b32 v{t1}, 1, v{t1}")
        A(f"v_lshlrev_b32 v{t1}, 2, v{t1}")
        A(f"v_xor_b32 v{t1}, v{t0}, v{t1}")
        A(f"v_lshlrev_b32 v{vgsw}, 4, v{t1}")
        A(f"s_cmp_eq_u32 s{sTYPE}, 0")
        A(f"s_movk_i32 s{sSTR}, 2752")
        A(f"s_cmovk_i32 s{sSTR}, 3072")
        A(f"s_lshl_b32 s80, s{sG}, 7")
        A("s_lshl_b32 s81, s83, 6")
        A(f"s_cmp_eq_u32 s{sTYPE}, 0")
        A("s_cselect_b32 s80, s80, s81")
        A("s_cselect_b32 s81, 0x400, 0")
        A("s_movk_i32 s82, 0x80")
        A("s_cmovk_i32 s82, 0x800")
        A(f"s_cselect_b32 s{sT}, 0, 0x100")
        A("s_add_u32 s81, s81, s80")
        A("s_add_u32 s82, s82, s80")
        A(f"s_add_u32 s80, s{sT}, s80")
        A(f"s_lshl_b32 s{sT}, s{sW}, 4")
        A(f"v_add_u32 v{t0}, s{sT}, v{vrow}")
        A(f"v_mul_u32_u24 v{t0}, s{sSTR}, v{t0}")
        A(f"v_add_u32 v{t0}, v{t0}, v{vgsw}")
        A(f"v_add_u32 v{vW[0]}, s81, v{t0}")
        A(f"v_add_u32 v{vW[1]}, s82, v{t0}")
        A(f"v_add_u32 v{vW[2]}, s80, v{t0}")
        A(f"s_cmp_ge_u32 s{sG}, 3")
        A(f"s_cselect_b32 s80, s{sTYPE}, 0")
        A("s_lshl_b32 s80, s80, 6")
        A(f"v_and_b32 v{t1}, s80, v{vgsw}")
        A(f"v_lshl_add_u32 v{vW[2]}, v{t1}, 24, v{vW[2]}")
        A(f"s_lshl_b32 s{sT}, s{sSTR}, 3")
        for u in range(3):
            A(f"v_add_u32 v{vW[3+u]}, s{sT}, v{vW[u]}")
        A(f"s_lshl_b32 s{sXB}, s{sI}, 2")
        A(f"s_add_u32 s{sXB}, s{sXB}, s{sW}")
        A(f"s_lshl_b32 s{sXB}, s{sXB}, 15")
        A(f"s_lshl_b32 s{sLX}, s{sW}, 12")
        A(f"s_mul_i32 s{sLW}, s{sW}, 6144")
        A(f"s_add_u32 s{sLW}, s{sLW}, {L_W}")
        A(f"s_lshl_b32 s{sSTR}, s{sSTR}, 6")
        if cfg.rot1 > 1:
            A(f"s_lshl1_add_u32 s80, s{sG}, s{sTYPE}")
            A(f"s_add_u32 s80, s80, s{sI}")
            A(f"s_and_b32 s80, s80, {cfg.rot1 - 1}")
            A(f"s_mul_i32 s{sKS}, s80, {8 // cfg.rot1}")
        else:
            A(f"s_mov_b32 s{sKS}, 0")
        A("s_waitcnt lgkmcnt(0)")
        srd(A, dX, pX, 2097152)
        A(f"s_cmp_eq_u32 s{sTYPE}, 0")
        A(f"s_cselect_b64 s[{dW}:{dW+1}], s[{pWQKV}:{pWQKV+1}], s[{pW1}:{pW1+1}]")
        A(f"s_mov_b32 s{dW+2}, 1409024")
        A(f"s_cmov_b32 s{dW+2}, 1572864")
        A(f"s_mov_b32 s{dW+3}, 0x20000")
        self.stamp(0, real=True)
        self.stamp(1)

        def stage(s):
            slot = s % 3
            A(f"s_lshl_b32 s{sKX}, s{sKS}, 7")
            A(f"s_add_u32 s{sKX}, s{sKX}, s{sXB}")
            A(f"s_mul_i32 s{sKW}, s{sKS}, s{sSTR}")
            A(f"s_add_u32 s{sKS}, s{sKS}, 1")
            A(f"s_and_b32 s{sKS}, s{sKS}, 7")
            for n in range(4):
                A(f"s_add_u32 m0, s{sLX}, {slot * 16384 + n * 1024}")
                A(f"buffer_load_dwordx4 v{vX[n]}, s[{dX}:{dX+3}], s{sKX} offen lds")
            for rg in range(2):
                for u in range(3):
                    A(f"s_add_u32 m0, s{sLW}, {slot * 24576 + u * 2048 + rg * 1024}")
                    A(f"buffer_load_dwordx4 v{vW[3*rg+u]}, s[{dW}:{dW+3}], s{sKW} offen lds")

        stage(0)
        stage(1)
        srd(A, dW2, pW2, 1409024)
        srd(A, dWO, pWO, 524288)
        A(f"s_mul_i32 s80, s{sRT}, {RT_STRIDE}")
        A(f"s_add_u32 s{dAH}, s{pWS}, s80")
        A(f"s_addc_u32 s{dAH+1}, s{pWS+1}, 0")
        A(f"s_mov_b32 s{dAH+2}, {NSTEP_H * 2048}")
        A(f"s_mov_b32 s{dAH+3}, 0x20000")
        A(f"s_add_u32 s{dAO}, s{dAH}, {NSTEP_H * 2048}")
        A(f"s_addc_u32 s{dAO+1}, s{dAH+1}, 0")
        A(f"s_mov_b32 s{dAO+2}, {32 * 2048}")
        A(f"s_mov_b32 s{dAO+3}, 0x20000")
        srd(A, dOUT, pOUT, 2097152)
        srd(A, dB2, pB2, 1024)
        srd(A, dFL, pWS, WS_END)
        srd(A, dDBG, pDBG, 256)
        A(f"v_and_b32 v{vF}, 15, v0")
        A(f"v_lshlrev_b32 v{vF}, 2, v{vF}")
        A(f"s_lshl_b32 s{sFH}, s{sRT}, 7")
        A(f"s_add_u32 s{sFH}, s{sFH}, {WS_FLAG}")
        A(f"s_add_u32 s{sFO}, s{sFH}, {32 * 128}")
        A(f"s_lshl_b32 s80, s{sCT}, 7")
        A(f"v_lshl_add_u32 v{vW2a}, v{vrow}, 10, v{vgsw}")
        A(f"v_add_u32 v{vW2a}, s80, v{vW2a}")
        A(f"v_add_u32 v{vW2b}, {8192 - 1024}, v{vW2a}")
        A(f"v_lshrrev_b32 v{t0}, 5, v0")
        A(f"v_bfe_u32 v{t1}, v0, 2, 2")
        A(f"v_lshlrev_b32 v{t2}, 9, v{t0}")
        A(f"v_lshl_add_u32 v{t2}, v{t1}, 7, v{t2}")
        A(f"v_lshrrev_b32 v{t1}, 1, v{t1}")
        A(f"s_and_b32 s80, s{sW}, 1")
        A(f"v_xor_b32 v{t1}, s80, v{t1}")
        A(f"v_lshl_add_u32 v{t2}, v{t1}, 6, v{t2}")
        A(f"v_bfe_u32 v{t1}, v0, 4, 1")
        A(f"v_lshl_add_u32 v{t2}, v{t1}, 5, v{t2}")
        A(f"v_and_b32 v{t1}, 3, v0")
        A(f"v_lshl_add_u32 v{t2}, v{t1}, 3, v{t2}")
        A(f"v_xor_b32 v{t3}, 64, v{t2}")
        A(f"v_add_u32 v{vtr+0}, s{sLX}, v{t2}")
        A(f"v_add_u32 v{vtr+1}, s{sLX}, v{t3}")
        A(f"v_add_u32 v{vtr+2}, s{sLW}, v{t2}")
        A(f"v_add_u32 v{vtr+3}, s{sLW}, v{t3}")
        A(f"v_add_u32 v{vtr+4}, 49152, v{vtr+2}")
        A(f"v_add_u32 v{vtr+5}, 49152, v{vtr+3}")
        A(f"s_lshr_b32 s81, s{sW}, 1")
        A("s_lshl_b32 s82, s81, 10")
        A(f"v_lshl_add_u32 v{vA0}, v0, 4, s82")
        A(f"v_xor_b32 v{vA1}, 0x400, v{vA0}")
        A(f"s_lshl1_add_u32 s81, s{sRT}, s81")
        A("s_lshl_b32 s81, s81, 15")
        A(f"s_lshl1_add_u32 s80, s{sCT}, s80")
        A(f"s_lshl_b32 s{sT}, s80, 6")
        A(f"s_add_u32 s81, s81, s{sT}")
        A(f"v_and_b32 v{t1}, 31, v0")
        A(f"v_lshl_add_u32 v{vO}, v{t1}, 10, s81")
        if cfg.rot2 > 1:
            A(f"s_add_u32 s80, s{sRT}, s{sCT}")
            A(f"s_and_b32 s80, s80, {cfg.rot2 - 1}")
            A(f"s_mul_i32 s80, s80, {4 * (22 // cfg.rot2)}")
            A(f"s_add_u32 s80, s80, s{sW}")
        else:
            A(f"s_mov_b32 s80, s{sW}")
        A(f"s_lshl_b32 s{sS2}, s80, 14")
        A(f"s_lshl_b32 s{sSA}, s80, 11")

        for s in range(6):
            A("s_waitcnt vmcnt(10)")
            A("s_barrier")
            if s == 0:
                self.stamp(2)
            if s == 5:
                A(f"buffer_load_dword v{vP}, off, s[{dDBG}:{dDBG+3}], 0 sc1")
            stage(s + 2)
        A("s_waitcnt vmcnt(10)")
        A(f"v_readfirstlane_b32 s81, v{vP}")
        A("s_cmp_lg_u32 s81, 0")
        A("s_cbranch_scc1 L_clr_ok")
        A(f"s_mov_b32 s80, {SPIN}")
        A("L_clr:")
        A(f"buffer_load_dword v{vP}, off, s[{dDBG}:{dDBG+3}], 0 sc1")
        A("s_sub_u32 s80, s80, 1")
        A("s_cbranch_scc1 L_clr_ok")
        A("s_waitcnt vmcnt(0)")
        A(f"v_readfirstlane_b32 s81, v{vP}")
        A("s_cmp_lg_u32 s81, 0")
        A("s_cbranch_scc0 L_clr")
        A("L_clr_ok:")
        A("s_barrier")

        def slots_of(k):
            return [("X", k, 0), ("X", k, 1), ("W", k, 0), ("W", k, 1), ("W", k, 2)]
        free = [("W", 3, 0), ("W", 3, 1), ("W", 3, 2)] + slots_of(2)
        where = {}

        def lds_imm(sl):
            reg, k, idx = sl
            return k * 16384 + idx * 2048 if reg == "X" else k * 24576 + idx * 2048

        def issue_w2(n):
            sl = free.pop(0)
            where[n] = sl
            base = sLX if sl[0] == "X" else sLW
            d = dW2 if n < 22 else dWO
            if n == 22:
                A(f"s_lshl_b32 s{sS2}, s{sW}, 14")
            A(f"s_add_u32 m0, s{base}, {lds_imm(sl)}")
            A(f"buffer_load_dwordx4 v{vW2a}, s[{d}:{d+3}], s{sS2} offen lds")
            A(f"buffer_load_dwordx4 v{vW2b}, s[{d}:{d+3}], s{sS2} offen offset:1024 lds")
            A(f"s_add_u32 s{sS2}, s{sS2}, 0x10000")
            if cfg.rot2 > 1 and n < 21:
                A(f"s_cmp_ge_u32 s{sS2}, {88 << 14}")
                A(f"s_cselect_b32 s80, {88 << 14}, 0")
                A(f"s_sub_u32 s{sS2}, s{sS2}, s80")

        def tr_reads(n, dst):
            reg, k, idx = where[n]
            if reg == "X":
                a, imm = vtr, lds_imm(where[n])
            elif k < 2:
                a, imm = vtr + 2, lds_imm(where[n])
            else:
                a, imm = vtr + 4, lds_imm(where[n]) - 49152
            return [f"ds_read_b64_tr_b16 {vr(dst + 4 * nt + 2 * j, 2)}, v{a + nt} offset:{imm + 1024 * j}"
                    for nt in range(2) for j in range(2)]

        for n in range(4):
            issue_w2(n)
        A("s_waitcnt vmcnt(8)")
        A("s_barrier")
        self.stamp(3)
        free.extend(slots_of(0))
        pending = None
        for n in range(4, 30):
            if pending is not None:
                A("s_waitcnt lgkmcnt(0)")
                free.append(pending); pending = None
            if not free:
                A(f"v_mov_b32 v{t0}, {L_FL}")
                self.lds_spin(t0, 0, 4, bwork, [])
                free.extend(slots_of(1))
            issue_w2(n)
            if n - 4 < NREG:
                A("s_waitcnt vmcnt(8)")
                for x in tr_reads(n - 4, breg + 8 * (n - 4)):
                    A(x)
                pending = where[n - 4]
        xr, br = acc + 16, acc + 24
        A(f"v_lshrrev_b32 v{t0}, 5, v0")
        A(f"v_lshl_add_u32 v{t1}, v{t0}, 3, v{vO}")
        A(f"v_lshl_add_u32 v{t2}, v{t0}, 3, s{sT}")
        A(f"v_lshl_add_u32 v{vO}, v{t0}, 4, v{vO}")
        for j in range(4):
            A(f"buffer_load_dwordx2 {vr(xr + 2 * j, 2)}, v{t1}, s[{dX}:{dX+3}], 0 offen offset:{16 * j}")
        for j in range(4):
            A(f"buffer_load_dwordx2 {vr(br + 2 * j, 2)}, v{t2}, s[{dB2}:{dB2+3}], 0 offen offset:{16 * j}")
        self.stamp(4)
        self.wait_flags(dFL, sFH, vF, vP)
        self.stamp(5)

        def a_loads(n):
            b = aring + 8 * (n % (R + 1))
            d = dAH if n < 22 else dAO
            out = []
            if n == 22:
                out.append(f"s_lshl_b32 s{sSA}, s{sW}, 11")
            out.append(f"buffer_load_dwordx4 {vr(b, 4)}, v{vA0}, s[{d}:{d+3}], s{sSA} offen sc1")
            out.append(f"buffer_load_dwordx4 {vr(b + 4, 4)}, v{vA1}, s[{d}:{d+3}], s{sSA} offen sc1")
            out.append(f"s_add_u32 s{sSA}, s{sSA}, 0x2000")
            if cfg.rot2 > 1 and n < 21:
                out.append(f"s_cmp_ge_u32 s{sSA}, {88 << 11}")
                out.append(f"s_cselect_b32 s80, {88 << 11}, 0")
                out.append(f"s_sub_u32 s{sSA}, s{sSA}, s80")
            return out

        for n in range(R):
            for x in a_loads(n):
                A(x)
        A(f"s_waitcnt vmcnt({2 * R})")
        A("s_mov_b32 s82, 0xffff0000")
        for q in range(8):
            A(f"v_lshlrev_b32 v{acc + 2 * q}, 16, v{xr + q}")
            A(f"v_and_b32 v{acc + 2 * q + 1}, s82, v{xr + q}")
            A(f"v_lshlrev_b32 v{acc + 32 + 2 * q}, 16, v{br + q}")
            A(f"v_and_b32 v{acc + 33 + 2 * q}, s82, v{br + q}")
        for q in range(8):
            A(f"v_pk_add_f32 {vr(acc + 2 * q, 2)}, {vr(acc + 2 * q, 2)}, {vr(acc + 32 + 2 * q, 2)}")

        for n in range(30):
            nxt = n + R
            if nxt == 22:
                self.stamp(6)
                self.wait_flags(dFL, sFO, vF, vP)
                self.stamp(7)
            loads = a_loads(nxt) if nxt < 30 else []
            for x in loads:
                A(x)
            left = min(R, 29 - n)
            bsrc = breg + 8 * n if n < NREG else bwork + 8 * (n % 2)
            A(f"s_waitcnt vmcnt({2 * left})" + (" lgkmcnt(0)" if n >= NREG else ""))
            b = aring + 8 * (n % (R + 1))
            mf = []
            for tt in range(2):
                for nt in range(2):
                    blk = acc + 16 * (nt + 2 * tt)
                    c = "0" if (n == 0 and blk != acc) else vr(blk, 16)
                    mf.append(f"v_mfma_f32_32x32x16_bf16 {vr(blk, 16)}, {vr(bsrc + 4 * nt, 4)}, {vr(b + 4 * tt, 4)}, {c}")
            if NREG <= n + 1 < 30:
                mf = interleave(mf, (tr_reads(n + 1, bwork + 8 * ((n + 1) % 2)), 0, 1))
            for x in mf:
                A(x)
        self.stamp(8)
        vr0 = t0
        A(f"v_lshl_add_u32 v{vr0}, v0, 4, s{sLX}")
        for blk in range(1, 4):
            for q in range(4):
                A(f"ds_write_b128 v{vr0}, {vr(acc + 16 * blk + 4 * q, 4)} offset:{(blk - 1) * 16384 + q * 1024}")
        for blk in range(1, 4):
            A(f"v_xor_b32 v{t0 + blk}, {blk << 12}, v{vr0}")
        A("s_waitcnt lgkmcnt(0)")
        A("s_barrier")
        for q in range(4):
            for blk in range(1, 4):
                A(f"ds_read_b128 {vr(breg + 16 * blk + 4 * q, 4)}, v{t0 + blk} offset:{(blk - 1) * 16384 + q * 1024}")
        pk = breg
        for q in range(4):
            A(f"s_waitcnt lgkmcnt({9 - 3 * q})")
            for blk in range(1, 4):
                for d in range(2):
                    a = acc + 4 * q + 2 * d
                    A(f"v_pk_add_f32 {vr(a, 2)}, {vr(a, 2)}, {vr(breg + 16 * blk + 4 * q + 2 * d, 2)}")
            for d in range(2):
                A(f"v_cvt_pk_bf16_f32 v{pk + 2 * q + d}, v{acc + 4 * q + 2 * d}, v{acc + 4 * q + 2 * d + 1}")
            if q % 2 == 1:
                p = pk + 2 * (q - 1)
                A(f"v_permlane32_swap_b32 v{p}, v{p + 2}")
                A(f"v_permlane32_swap_b32 v{p + 1}, v{p + 3}")
                A(f"buffer_store_dwordx4 {vr(p, 4)}, v{vO}, s[{dOUT}:{dOUT+3}], 0 offen offset:{16 * (q - 1)}")
        if cfg.stamps or cfg.amp >= 0:
            A("s_waitcnt vmcnt(0)")
            self.stamp(9)
            self.stamp(10, real=True)
            self.stamp_out()
        if cfg.amp >= 0:
            A("s_sub_u32 s98, s98, s96")
            A("s_lshr_b32 s98, s98, 1" if cfg.ampcyc else "s_mul_i32 s98, s98, 10")
            A("s_min_u32 s98, s98, 200000")
            A("s_memrealtime s[96:97]")
            A("L_amp:")
            A("s_memrealtime s[100:101]")
            A("s_waitcnt lgkmcnt(0)")
            A("s_sub_u32 s100, s100, s96")
            A("s_cmp_lt_u32 s100, s98")
            A("s_cbranch_scc1 L_amp")
        A("s_endpgm")
        self.inL = False

    def cwave(self):
        A, cfg = self.A, self.cfg
        dWS, dB1, dDBG = 32, 36, 40
        self.dWS = dWS
        sR, sC, sMASK, sEPS, sL2E, sA2, sFL, sPERM, sHI = 84, 85, 86, 88, 90, 92, 93, 94, 44
        self.sc = dict(sR=sR, sC=sC, sMASK=sMASK, sEPS=sEPS, sL2E=sL2E, sA2=sA2, sFL=sFL, sPERM=sPERM, sHI=sHI)
        al = Alloc(1, 254)
        V = self.V = {}
        V["acc"] = al(96, 4)
        V["fr"] = al(40, 4)
        V["cs"] = al(12, 4)
        V["sel"] = al(4, 4)
        V["aug"] = al(20, 4)
        V["perm"] = al(4, 4)
        V["ones"] = al(4, 4)
        V["rT"] = al(32, 4)
        V["xa"] = al(8)
        V["wa"] = al(4)
        V["st"] = al(4)
        V["t"] = al(8, 4)
        V["r"] = al(4, 2)
        V["b1"] = al(3)
        V["tok"] = al(2)
        V["l16"] = al(1)
        V["one"] = al(1)
        V["fl"] = al(1)
        t = V["t"]
        A("L_C:")
        if cfg.code_pf:
            A("s_getpc_b64 s[80:81]")
            A("L_pc:")
            A(f"s_sub_u32 s80, s80, L_pc-{NAME}")
            A("s_subb_u32 s81, s81, 0")
            A("s_lshr_b32 s82, s2, 3")
            A(f"s_lshl2_add_u32 s82, s82, s{sW}")
            A(f"v_and_b32 v{t}, 3, v0")
            A(f"v_lshl_add_u32 v{t}, v{t}, 7, s82")
            A(f"v_lshlrev_b32 v{t}, 7, v{t}")
            A(f"v_min_u32 v{t}, L_end-{NAME}-4, v{t}")
            A("s_mov_b64 exec, 15")
            A(f"global_load_dword v{V['rT']}, v{t}, s[80:81]")
            A("s_mov_b64 exec, -1")
        A(f"s_lshr_b32 s{sR}, s{sW}, 1")
        A(f"s_and_b32 s{sC}, s{sW}, 1")
        A(f"s_mov_b32 s{sMASK}, 0xffff0000")
        A(f"s_mov_b32 s{sEPS}, 0x358637bd")
        A(f"s_mov_b32 s{sEPS+1}, 0x358637bd")
        A(f"s_mov_b32 s{sL2E}, 0x3fb8aa3b")
        A(f"s_mov_b32 s{sL2E+1}, 0x3fb8aa3b")
        A(f"s_mov_b32 s{sPERM}, 0x07060302")
        A(f"s_mov_b32 s{sHI}, 0xffff0000")
        A(f"s_mov_b32 s{sHI+1}, 0xffff0000")
        A(f"v_and_b32 v{t}, 31, v0")
        A(f"v_lshrrev_b32 v{t+1}, 5, v0")
        A(f"s_lshl_b32 s80, s{sW}, 5")
        A(f"v_add_u32 v{t+2}, s80, v{t}")
        A(f"v_lshlrev_b32 v{V['tok']}, 2, v{t+2}")
        A(f"v_add_u32 v{V['tok']}, {L_MISC}, v{V['tok']}")
        A(f"v_xor_b32 v{V['tok']+1}, 0x80, v{V['tok']}")
        A(f"v_bfe_u32 v{t+3}, v0, 1, 3")
        A(f"v_xor_b32 v{t+3}, v{t+3}, v{t+1}")
        A(f"s_lshl_b32 s80, s{sR}, 1")
        A(f"v_xor_b32 v{t+3}, s80, v{t+3}")
        A(f"v_lshlrev_b32 v{t+3}, 4, v{t+3}")
        A(f"v_lshl_add_u32 v{V['xa']}, v{t+2}, 7, v{t+3}")
        for p in range(1, 4):
            A(f"v_xor_b32 v{V['xa']+2*p}, {32 * p}, v{V['xa']}")
        for p in range(4):
            A(f"v_xor_b32 v{V['xa']+2*p+1}, 0x1000, v{V['xa']+2*p}")
        A(f"v_bfe_u32 v{t+2}, v0, 2, 2")
        A(f"v_lshlrev_b32 v{t+3}, 10, v{t+1}")
        A(f"v_lshl_add_u32 v{t+3}, v{t+2}, 7, v{t+3}")
        A(f"v_lshrrev_b32 v{t+2}, 1, v{t+2}")
        A(f"v_xor_b32 v{t+2}, s{sC}, v{t+2}")
        A(f"v_lshl_add_u32 v{t+3}, v{t+2}, 6, v{t+3}")
        A(f"v_bfe_u32 v{t+2}, v0, 4, 1")
        A(f"v_lshl_add_u32 v{t+3}, v{t+2}, 5, v{t+3}")
        A(f"v_and_b32 v{t+2}, 3, v0")
        A(f"v_lshl_add_u32 v{t+3}, v{t+2}, 3, v{t+3}")
        A(f"s_mul_i32 s80, s{sR}, 6144")
        A(f"s_sub_u32 s81, {L_W}, s80")
        A(f"s_add_u32 s80, s80, {L_W}")
        A(f"v_add_u32 v{V['wa']}, s80, v{t+3}")
        A(f"v_add_u32 v{V['wa']+1}, s81, v{t+3}")
        A(f"v_add_u32 v{V['wa']+2}, 49152, v{V['wa']}")
        A(f"v_add_u32 v{V['wa']+3}, 49152, v{V['wa']+1}")
        A(f"v_lshrrev_b32 v{t+2}, 4, v0")
        A(f"v_bfe_u32 v{t+3}, v0, 2, 2")
        A(f"v_mov_b32 v{V['ones']}, 0x3f803f80")
        A(f"v_cmp_eq_u32 vcc, v{t+2}, v{t+3}")
        for q in range(1, 4):
            A(f"v_mov_b32 v{V['ones']+q}, v{V['ones']}")
        for q in range(4):
            A(f"v_cndmask_b32 v{V['sel']+q}, 0, v{V['ones']}, vcc")
        for q in range(5):
            A(f"v_mov_b32 v{V['aug']+4*q+2}, 0")
            A(f"v_mov_b32 v{V['aug']+4*q+3}, 0")
        for q in range(4):
            A(f"v_mov_b32 v{V['st']+q}, 0")
        A(f"v_lshlrev_b32 v{V['l16']}, 4, v0")
        A(f"v_mov_b32 v{V['one']}, 1")
        A(f"v_mov_b32 v{V['fl']}, {L_FL}")
        A(f"v_lshlrev_b32 v{t+2}, 2, v0")
        A(f"v_add_u32 v{t+2}, {L_FL}, v{t+2}")
        A(f"ds_write_b32 v{t+2}, v{V['st']}")
        A("s_waitcnt lgkmcnt(0)")
        self.stamp(0, real=True)
        self.stamp(1)
        srd(A, dWS, pWS, WS_END)
        A(f"s_lshl1_add_u32 s80, s{sI}, s{sR}")
        A(f"s_mul_i32 s{sA2}, s80, {RT_STRIDE}")
        A(f"s_lshl_b32 s{sFL}, s80, 5")
        A(f"s_lshl1_add_u32 s81, s{sG}, s{sC}")
        A(f"s_add_u32 s{sFL}, s{sFL}, s81")
        A(f"s_lshl_b32 s{sFL}, s{sFL}, 2")
        A(f"s_add_u32 s{sFL}, s{sFL}, {WS_FLAG}")
        A(f"s_lshl3_add_u32 s80, s2, s{sWAVE}")
        A("s_cmp_eq_u32 s80, 1")
        A("s_cbranch_scc0 L_noclr")
        srd(A, dDBG, pDBG, 256)
        z = V["rT"] + 4
        for q in range(4):
            A(f"v_mov_b32 v{z+q}, 0")
        A(f"s_mov_b32 s80, {WS_FLAG}")
        for q in range(10):
            A(f"buffer_store_dwordx4 {vr(z, 4)}, v{V['l16']}, s[{dWS}:{dWS+3}], s80 offen sc1")
            A("s_add_u32 s80, s80, 0x400")
        A("s_waitcnt vmcnt(0)")
        A("s_mov_b32 s80, 0")
        self.set_flag(dDBG, 80, V["one"])
        A("L_noclr:")
        A(f"s_cmp_eq_u32 s{sTYPE}, 0")
        A("s_cbranch_scc1 L_attn")
        srd(A, dB1, pB1, 2752)
        A(f"s_add_u32 s80, s83, s{sC}")
        A("s_lshl_b32 s81, s80, 12")
        A(f"s_add_u32 s{sA2}, s{sA2}, s81")
        A("s_lshl_b32 s80, s80, 6")
        A(f"v_lshlrev_b32 v{t+2}, 1, v{t}")
        A(f"v_lshl_add_u32 v{t+2}, v{t+1}, 20, v{t+2}")
        for u in range(3):
            A(f"buffer_load_ushort v{V['b1']+u}, v{t+2}, s[{dB1}:{dB1+3}], s80 offen offset:{128 * u}")
        self.kloop(False)
        self.mlp_tail()
        A("L_attn:")
        for u in range(3):
            A(f"v_mov_b32 v{V['b1']+u}, 0")
        A(f"v_bfe_u32 v{t+2}, v0, 2, 1")
        A(f"v_xor_b32 v{t+2}, v{t+2}, v{t+1}")
        A(f"v_bfe_u32 v{t+3}, v0, 4, 1")
        A(f"v_or_b32 v{t+2}, v{t+2}, v{t+3}")
        A(f"v_bfe_u32 v{t+3}, v0, 3, 1")
        A(f"v_lshl_add_u32 v{t+2}, v{t+2}, 1, v{t+3}")
        A(f"v_bfe_u32 v{t+3}, v0, 1, 1")
        A(f"v_lshl_add_u32 v{t+2}, v{t+2}, 1, v{t+3}")
        A(f"v_and_b32 v{t+3}, 1, v0")
        A(f"v_lshlrev_b32 v{t+3}, 4, v{t+3}")
        A(f"v_mov_b32 v{t+4}, 0x3f80")
        A(f"v_lshlrev_b32 v{t+3}, v{t+3}, v{t+4}")
        for q in range(4):
            A(f"v_cmp_eq_u32 vcc, {q}, v{t+2}")
            A(f"v_cndmask_b32 v{V['perm']+q}, 0, v{t+3}, vcc")
        self.kloop(True)
        self.attn_tail()

    def kloop(self, attn):
        A, V, sc = self.A, self.V, self.sc
        acc, fr, cs, st, t = V["acc"], V["fr"], V["cs"], V["st"], V["t"]

        def reads(n):
            s, p = divmod(n, 4)
            slot = s % 3
            f = fr + 20 * (n % 2)
            wa = V["wa"] + (p & 1) + (2 if slot == 2 else 0)
            wi = (0 if slot == 2 else slot * 24576) + p * 6144
            x = [f"ds_read_b128 {vr(f + 4 * a, 4)}, v{V['xa'] + 2 * p + a} offset:{slot * 16384}" for a in range(2)]
            w = [f"ds_read_b64_tr_b16 {vr(f + 8 + 4 * u + 2 * j, 2)}, v{wa} offset:{wi + u * 2048 + j * 512}"
                 for u in range(3) for j in range(2)]
            return [x[0]] + w[:2] + [x[1]] + w[2:]

        def mfma(dst, xf, wf, u, c):
            a, b = (xf, wf) if (attn and u < 2) else (wf, xf)
            return f"v_mfma_f32_32x32x16_bf16 {vr(dst, 16)}, {vr(a, 4)}, {vr(b, 4)}, {c}"
        self.mfma1 = mfma

        A("s_barrier")
        self.stamp(2)
        for x in reads(0):
            A(x)
        for n in range(32):
            s, p = divmod(n, 4)
            f = fr + 20 * (n % 2)
            A("s_waitcnt lgkmcnt(0)")
            if p == 3 and s < 7:
                A("s_barrier")
            prim = []
            for u in range(3):
                for a in range(2):
                    d = acc + 16 * (2 * u + a)
                    prim.append(mfma(d, f + 4 * a, f + 8 + 4 * u, u, "0" if n == 0 else vr(d, 16)))
                if p % 2 == 0:
                    d = cs + 4 * u
                    prim[-1] += f"\nv_mfma_f32_16x16x32_bf16 {vr(d, 4)}, {vr(V['sel'], 4)}, {vr(f + 8 + 4 * u, 4)}, " + ("0" if n == 0 else vr(d, 4))
            va = []
            for q in range(4):
                a, b = t + 2 * (q % 2), t + 2 * (q % 2) + 1
                va.append(f"v_lshlrev_b32 v{a}, 16, v{f + q}\nv_and_b32 v{b}, s{sc['sMASK']}, v{f + q}")
                va.append(f"v_add_f32 v{st}, v{st}, v{a}\nv_add_f32 v{st+1}, v{st+1}, v{b}")
                va.append(f"v_fmac_f32 v{st+2}, v{a}, v{a}\nv_fmac_f32 v{st+3}, v{b}, v{b}")
            if n < 31:
                seq = interleave(prim, (reads(n + 1), 0, 3), (va, 0, 5))
            else:
                seq = interleave(prim, (va, 0, 2), (self.stats_final(), 3, 5))
            for x in seq:
                A(x)
        self.stamp(3)
        tok = V["tok"]
        ms, r0, r1 = V["aug"] + 1, V["r"], V["r"] + 2
        A(f"ds_write_b32 v{tok}, v{r0} offset:0")
        A(f"ds_write_b32 v{tok}, v{ms} offset:512")
        A(f"s_mul_i32 s80, s{sW}, 768")
        A(f"s_add_u32 s80, s80, {L_CS}")
        A(f"v_lshl_add_u32 v{t}, v0, 2, s80")
        A(f"s_xor_b32 s81, s{sW}, 2")
        A("s_mul_i32 s81, s81, 768")
        A(f"s_add_u32 s81, s81, {L_CS}")
        A(f"v_lshl_add_u32 v{t+1}, v0, 2, s81")
        for u in range(3):
            A(f"ds_write_b32 v{t}, v{cs + 4 * u} offset:{256 * u}")
        A(f"s_lshl_b32 s80, s{sW}, 2")
        A(f"v_add_u32 v{t+2}, s80, v{V['fl']}")
        A(f"ds_write_b32 v{t+2}, v{V['one']}")
        rd = [f"ds_read_b32 v{cs + 4 * u + 1}, v{t+1} offset:{256 * u}" for u in range(3)]
        rd.append(f"ds_read_b32 v{V['aug'] + 5}, v{tok+1} offset:512")
        rd.append(f"ds_read_b32 v{r1}, v{tok+1} offset:0")
        if attn:
            A(f"v_lshrrev_b32 v{t+2}, 5, v0")
            A(f"s_lshl_b32 s80, s{sW}, 7")
            A(f"s_add_u32 s80, s80, {L_R}")
            A(f"v_lshl_add_u32 v{t+2}, v{t+2}, 4, s80")
            A(f"v_xor_b32 v{t+3}, 0x80, v{t+2}")
            rd += [f"ds_read_b128 {vr(V['rT'] + 16 * a + 4 * j, 4)}, v{t + 2 + a} offset:{32 * j}" for a in range(2) for j in range(4)]
        A("s_waitcnt vmcnt(0)")
        self.lds_spin(V["fl"], 0, 4, t + 4, rd)
        for a in range(2):
            A(f"v_perm_b32 v{V['aug'] + 4 * a}, v{V['aug'] + 4 * a + 1}, v{V['aug'] + 4 * a + 1}, s{sc['sPERM'] + 1}")
        for u in range(3):
            A(f"v_add_f32 v{cs + 4 * u}, v{cs + 4 * u}, v{cs + 4 * u + 1}")
        for u in range(3):
            A(f"v_and_b32 v{cs + 4 * u + 1}, s{sc['sMASK']}, v{cs + 4 * u}")
        for u in range(3):
            A(f"v_sub_f32 v{cs + 4 * u + 1}, v{cs + 4 * u}, v{cs + 4 * u + 1}")
        for u in range(3):
            A(f"v_perm_b32 v{V['aug'] + 8 + 4 * u}, v{cs + 4 * u + 1}, v{cs + 4 * u}, s{sc['sPERM']}")
            A(f"v_and_b32 v{cs + 4 * u + 2}, s{sc['sMASK']}, v{cs + 4 * u + 1}")
        for u in range(3):
            A(f"v_sub_f32 v{cs + 4 * u + 2}, v{cs + 4 * u + 1}, v{cs + 4 * u + 2}")
        for u in range(3):
            A(f"v_lshrrev_b32 v{cs + 4 * u + 2}, 16, v{cs + 4 * u + 2}")
        for u in range(3):
            A(f"v_lshl_or_b32 v{V['aug'] + 9 + 4 * u}, v{V['b1'] + u}, 16, v{cs + 4 * u + 2}")
        for u in range(3):
            for a in range(2):
                d = acc + 16 * (2 * u + a)
                A(mfma(d, V["aug"] + 4 * a, V["aug"] + 8 + 4 * u, u, vr(d, 16)))
        self.stamp(4)

    def stats_final(self):
        V, sc = self.V, self.sc
        st, t = V["st"], V["t"]
        ms, r0 = V["aug"] + 1, V["r"]
        return [
            f"v_add_f32 v{st}, v{st}, v{st+1}\nv_add_f32 v{st+2}, v{st+2}, v{st+3}",
            f"v_mov_b32 v{st+1}, v{st}\nv_mov_b32 v{st+3}, v{st+2}",
            f"s_mov_b32 s{sc['sPERM']+1}, 0x01000100",
            f"v_permlane32_swap_b32 v{st}, v{st+1}\nv_permlane32_swap_b32 v{st+2}, v{st+3}",
            f"v_add_f32 v{st}, v{st}, v{st+1}\nv_add_f32 v{st+2}, v{st+2}, v{st+3}",
            f"v_mul_f32 v{st}, 0xbb000000, v{st}",
            f"v_mul_f32 v{st+2}, 0x3b000000, v{st+2}",
            f"v_fma_f32 v{st+2}, -v{st}, v{st}, v{st+2}",
            f"v_max_f32 v{st+2}, 0, v{st+2}",
            f"v_cvt_pk_bf16_f32 v{t}, v{st+2}, v{st+2}",
            f"v_and_b32 v{t}, s{sc['sMASK']}, v{t}",
            f"v_add_f32 v{t}, 0x3727c5ac, v{t}",
            f"v_cvt_pk_bf16_f32 v{t}, v{t}, v{t}",
            f"v_and_b32 v{t}, s{sc['sMASK']}, v{t}",
            f"v_sqrt_f32 v{t}, v{t}",
            f"v_cvt_pk_bf16_f32 v{ms}, v{st}, v{t}",
            f"v_and_b32 v{t}, s{sc['sMASK']}, v{ms}",
            f"v_rcp_f32 v{r0}, v{t}",
        ]

    def mlp_tail(self):
        A, V, sc = self.A, self.V, self.sc
        acc, t, dWS = V["acc"], V["t"], self.dWS
        A(f"s_lshl_b32 s80, s{sc['sC']}, 10")
        A(f"v_add_u32 v{t}, s80, v{V['l16']}")
        A(f"v_xor_b32 v{t+1}, 0x400, v{t}")
        for u in range(3):
            if u == 2:
                A(f"s_cmp_ge_u32 s{sG}, 3")
                A(f"s_cselect_b32 s80, s{sc['sC']}, 0")
                A("s_cmp_eq_u32 s80, 1")
                A("s_cbranch_scc1 L_mlp_done")
            for a in range(2):
                d = acc + 16 * (2 * u + a)
                pk = V["fr"] + 8 * a
                for q in range(8):
                    A(f"v_pk_mul_f32 {vr(d + 2 * q, 2)}, {vr(d + 2 * q, 2)}, {vr(V['r'] + 2 * a, 2)} op_sel_hi:[1,0]")
                for q in range(16):
                    A(f"v_max_f32 v{d + q}, 0, v{d + q}")
                for q in range(8):
                    A(f"v_pk_mul_f32 {vr(d + 2 * q, 2)}, {vr(d + 2 * q, 2)}, {vr(d + 2 * q, 2)}")
                for s in range(2):
                    for q in range(4 * s, 4 * s + 4):
                        A(f"v_cvt_pk_bf16_f32 v{pk + q}, v{d + 2 * q}, v{d + 2 * q + 1}")
                    A(f"buffer_store_dwordx4 {vr(pk + 4 * s, 4)}, v{t + a}, s[{dWS}:{dWS+3}], s{sc['sA2']} offen offset:{2048 * s} sc1")
            A(f"s_add_u32 s{sc['sA2']}, s{sc['sA2']}, 0x2000")
        A("L_mlp_done:")
        self.stamp(5)
        A("s_waitcnt vmcnt(0)")
        self.set_flag(dWS, sc["sFL"], V["one"])
        self.stamp(6)
        self.stamp_out()
        A("s_endpgm")

    def phi(self, d, rsrc, pk, tmp):
        A, sc = self.A, self.sc
        e, l = sr(sc["sEPS"], 2), sr(sc["sL2E"], 2)
        for q in range(8):
            A(f"v_pk_fma_f32 {vr(d + 2 * q, 2)}, {vr(d + 2 * q, 2)}, {rsrc(q)[0]}, {e}{rsrc(q)[1]}")
        for q in range(8):
            A(f"v_pk_mul_f32 {vr(tmp + 2 * q, 2)}, {vr(d + 2 * q, 2)}, {l}")
        for q in range(16):
            A(f"v_exp_f32_e64 v{tmp + q}, v{tmp + q} clamp")
            A(f"v_max_f32_e64 v{d + q}, s{sc['sEPS']}, v{d + q}")
        for q in range(8):
            A(f"v_pk_add_f32 {vr(d + 2 * q, 2)}, {vr(d + 2 * q, 2)}, {vr(tmp + 2 * q, 2)}")
        for q in range(8):
            A(f"v_cvt_pk_bf16_f32 v{pk + q}, v{d + 2 * q}, v{d + 2 * q + 1}")

    def attn_tail(self):
        A, V, sc = self.A, self.V, self.sc
        acc, t, dWS, fr, rT = V["acc"], V["t"], self.dWS, V["fr"], V["rT"]
        sR, sC, sHI = sc["sR"], sc["sC"], sc["sHI"]
        hi = sr(sHI, 2)
        tmp = V["cs"]
        pkf, vf = fr, fr + 16
        for a in range(2):
            self.phi(acc + 16 * a, lambda q: (vr(rT + 16 * a + 2 * q, 2), ""), pkf + 8 * a, tmp)
            d = acc + 32 + 16 * a
            for q in range(8):
                A(f"v_pk_mul_f32 {vr(d + 2 * q, 2)}, {vr(d + 2 * q, 2)}, {vr(rT + 16 * a + 2 * q, 2)}")
            for q in range(8):
                A(f"v_cvt_pk_bf16_f32 v{vf + 8 * a + q}, v{d + 2 * q}, v{d + 2 * q + 1}")
        D1, D2 = acc, acc + 16
        for k in range(4):
            A(f"v_mfma_f32_32x32x16_bf16 {vr(D1, 16)}, {vr(pkf + 4 * k, 4)}, {vr(vf + 4 * k, 4)}, " + ("0" if k == 0 else vr(D1, 16)))
            A(f"v_mfma_f32_32x32x16_bf16 {vr(D2, 16)}, {vr(pkf + 4 * k, 4)}, {vr(V['ones'], 4)}, " + ("0" if k == 0 else vr(D2, 16)))
        sPG, sKV, sZ, sFK = 46, 47, 48, 49
        A(f"s_lshl1_add_u32 s{sPG}, s{sG}, s{sC}")
        A(f"s_lshl4_add_u32 s80, s{sPG}, s{sI}")
        A(f"s_lshl_b32 s{sKV}, s80, 10")
        A(f"s_add_u32 s{sKV}, s{sKV}, {WS_KVP}")
        A(f"s_lshl_b32 s{sZ}, s80, 7")
        A(f"s_add_u32 s{sZ}, s{sZ}, {WS_ZP}")
        A(f"s_lshl_b32 s{sFK}, s{sPG}, 7")
        A(f"s_add_u32 s{sFK}, s{sFK}, {WS_FLAG + 64 * 128}")
        A(f"s_lshl_b32 s80, s{sC}, 12")
        A(f"s_add_u32 s80, s80, {L_KVX}")
        vx, vfl = t, t + 1
        A(f"v_add_u32 v{vx}, s80, v{V['l16']}")
        A(f"s_lshl_b32 s80, s{sC}, 2")
        A(f"v_add_u32 v{vfl}, s80, v{V['fl']}")
        A(f"v_lshrrev_b32 v{t+2}, 4, v0")
        A(f"v_lshlrev_b32 v{t+2}, 5, v{t+2}")
        KV, Z = acc + 32, acc + 40
        for e in range(8):
            A(f"v_cndmask_b32 v{KV + e}, v{D1 + e}, v{D1 + 8 + e}, {hi}")
        for e in range(8):
            A(f"v_cndmask_b32 v{Z + e}, v{D2 + 8 + e}, v{D2 + e}, {hi}")
        A(f"s_cmp_eq_u32 s{sR}, 0")
        A("s_cbranch_scc1 L_kv_r0")
        for q in range(4):
            A(f"ds_write_b128 v{vx}, {vr(KV + 4 * q, 4)} offset:{1024 * q}")
        A(f"ds_write_b32 v{vfl}, v{V['one']} offset:16")
        A("s_branch L_kv_join")
        A("L_kv_r0:")
        o = acc + 48
        self.lds_spin(vfl, 16, 1, t + 4, [f"ds_read_b128 {vr(o + 4 * q, 4)}, v{vx} offset:{1024 * q}" for q in range(4)])
        for q in range(8):
            A(f"v_pk_add_f32 {vr(KV + 2 * q, 2)}, {vr(KV + 2 * q, 2)}, {vr(o + 2 * q, 2)}")
        for q in range(4):
            A(f"v_cvt_pk_bf16_f32 v{o + q}, v{KV + 2 * q}, v{KV + 2 * q + 1}")
        A(f"buffer_store_dwordx4 {vr(o, 4)}, v{V['l16']}, s[{dWS}:{dWS+3}], s{sKV} offen sc1")
        A("s_mov_b32 exec_lo, 0x00010001")
        A("s_mov_b32 exec_hi, 0x00010001")
        for q in range(2):
            A(f"buffer_store_dwordx4 {vr(Z + 4 * q, 4)}, v{t+2}, s[{dWS}:{dWS+3}], s{sZ} offen offset:{16 * q} sc1")
        A("s_mov_b64 exec, -1")
        A("L_kv_join:")
        self.stamp(5)
        pq = fr
        for a in range(2):
            self.phi(acc + 64 + 16 * a, lambda q: (vr(V["r"] + 2 * a, 2), " op_sel_hi:[1,0,1]"), pq + 8 * a, tmp)
        A(f"s_cmp_eq_u32 s{sR}, 0")
        A("s_cbranch_scc0 L_kv_noflag")
        A("s_waitcnt vmcnt(0)")
        A(f"s_lshl2_add_u32 s80, s{sI}, s{sFK}")
        self.set_flag(dWS, 80, V["one"])
        A("L_kv_noflag:")
        self.stamp(6)
        A(f"s_lshl1_add_u32 s80, s{sPG}, s{sR}")
        A(f"s_lshl_b32 s{sKV}, s80, 13")
        A(f"s_add_u32 s{sKV}, s{sKV}, {WS_KVP}")
        A(f"s_add_u32 s50, s{sKV}, 0x1000")
        A(f"s_lshl_b32 s{sZ}, s{sPG}, 11")
        A(f"s_add_u32 s{sZ}, s{sZ}, {WS_ZP}")
        A(f"v_and_b32 v{t+3}, 15, v0")
        A(f"v_lshl_add_u32 v{t+2}, v{t+3}, 7, v{t+2}")
        A(f"s_lshl_b32 s80, s{sR}, 11")
        A(f"v_add_u32 v{vx}, s80, v{vx}")
        A(f"v_xor_b32 v{t+3}, 0x800, v{vx}")
        A(f"s_lshl_b32 s80, s{sW}, 2")
        A(f"v_add_u32 v{vfl}, s80, v{V['fl']}")
        A(f"v_xor_b32 v{V['st']}, 8, v{vfl}")
        A(f"s_lshl_b32 s80, s{sPG}, 12")
        A(f"s_add_u32 s{sc['sA2']}, s{sc['sA2']}, s80")
        A(f"s_add_u32 s{sc['sA2']}, s{sc['sA2']}, {NSTEP_H * 2048}")
        A(f"s_add_u32 s{sc['sFL']}, s{sc['sFL']}, {32 * 128}")
        A(f"s_lshl_b32 s80, s{sC}, 10")
        A(f"v_add_u32 v{V['st']+2}, s80, v{V['l16']}")
        A(f"v_xor_b32 v{V['st']+3}, 0x400, v{V['st']+2}")
        A(f"v_and_b32 v{t+4}, 15, v0")
        A(f"v_lshlrev_b32 v{t+4}, 2, v{t+4}")
        self.wait_flags(dWS, sFK, t + 4, t + 5)
        self.stamp(7)
        part = acc + 48
        for q in range(2):
            A(f"buffer_load_dwordx4 {vr(Z + 4 * q, 4)}, v{t+2}, s[{dWS}:{dWS+3}], s{sZ} offen offset:{16 * q} sc1")
        for p in range(8):
            A(f"buffer_load_dwordx4 {vr(part + 4 * p, 4)}, v{V['l16']}, s[{dWS}:{dWS+3}], s{sKV if p < 4 else 50} offen offset:{1024 * (p % 4)} sc1")
        A("s_waitcnt vmcnt(8)")
        for sh in (8, 4, 2, 1):
            for e in range(8):
                A(f"v_add_f32_dpp v{Z + e}, v{Z + e}, v{Z + e} row_ror:{sh} row_mask:0xf bank_mask:0xf")
        for p in range(8):
            A(f"s_waitcnt vmcnt({7 - p})")
            A(f"v_mfma_f32_32x32x16_bf16 {vr(D1, 16)}, {vr(V['perm'], 4)}, {vr(part + 4 * p, 4)}, " + ("0" if p == 0 else vr(D1, 16)))
        Zb, KVb, op0, op1 = tmp, tmp + 4, tmp + 8, tmp + 12
        for q in range(4):
            A(f"v_cvt_pk_bf16_f32 v{Zb + q}, v{Z + 2 * q}, v{Z + 2 * q + 1}")
        for q in range(2):
            A(f"ds_write_b128 v{vx}, {vr(D1 + 4 * q, 4)} offset:{1024 * q}")
        A(f"ds_write_b32 v{vfl}, v{V['one']} offset:32")
        self.lds_spin(V["st"], 32, 1, t + 4, [f"ds_read_b128 {vr(KV + 4 * q, 4)}, v{t+3} offset:{1024 * q}" for q in range(2)])
        for q in range(4):
            A(f"v_pk_add_f32 {vr(KV + 2 * q, 2)}, {vr(KV + 2 * q, 2)}, {vr(D1 + 2 * q, 2)}")
        for q in range(4):
            A(f"v_cvt_pk_bf16_f32 v{KVb + q}, v{KV + 2 * q}, v{KV + 2 * q + 1}")
        for q in range(4):
            A(f"v_cndmask_b32 v{op0 + q}, v{KVb + q}, v{Zb + q}, {hi}")
        for q in range(4):
            A(f"v_cndmask_b32 v{op1 + q}, v{Zb + q}, v{KVb + q}, {hi}")
        for a in range(2):
            for s in range(2):
                d = acc + 16 * (2 * a + s)
                A(f"v_mfma_f32_32x32x16_bf16 {vr(d, 16)}, {vr(op0 + 4 * s, 4)}, {vr(pq + 8 * a + 4 * s, 4)}, 0")
        ob = fr + 16
        for a in range(2):
            for s in range(2):
                d = acc + 16 * (2 * a + s)
                num, den = (d, d + 8) if s == 0 else (d + 8, d)
                A(f"v_add_f32 v{den}, s{sc['sEPS']}, v{den}")
                A(f"v_rcp_f32 v{den}, v{den}")
                for q in range(4):
                    A(f"v_pk_mul_f32 {vr(num + 2 * q, 2)}, {vr(num + 2 * q, 2)}, {vr(den, 2)} op_sel_hi:[1,0]")
                p = ob + 4 * (2 * a + s)
                for q in range(4):
                    A(f"v_cvt_pk_bf16_f32 v{p + q}, v{num + 2 * q}, v{num + 2 * q + 1}")
                A(f"buffer_store_dwordx4 {vr(p, 4)}, v{V['st'] + 2 + a}, s[{dWS}:{dWS+3}], s{sc['sA2']} offen offset:{2048 * s} sc1")
        self.stamp(8)
        A("s_waitcnt vmcnt(0)")
        self.set_flag(dWS, sc["sFL"], V["one"])
        self.stamp(9)
        self.stamp_out()
        A("s_endpgm")

    def build(self):
        self.entry()
        self.lwave()
        self.cwave()
        self.A("L_end:")
        body = self.A.finish()
        here = os.path.dirname(os.path.abspath(__file__))
        head = open(os.path.join(here, "header.txt")).read()
        return f"""{head}; @launch grid=(256,1,1) block=(512,1,1) lds={LDS_BYTES}
.amdgcn_target "amdgcn-amd-amdhsa--gfx950"
.text
.globl {NAME}
.p2align 8
.type {NAME},@function
{NAME}:
{body}
.section .rodata,"a"
.p2align 6
.amdhsa_kernel {NAME}
  .amdhsa_next_free_vgpr 256
  .amdhsa_next_free_sgpr 102
  .amdhsa_accum_offset 256
  .amdhsa_group_segment_fixed_size 0
  .amdhsa_kernarg_size 88
  .amdhsa_user_sgpr_count 2
  .amdhsa_user_sgpr_kernarg_segment_ptr 1
  .amdhsa_system_sgpr_workgroup_id_x 1
.end_amdhsa_kernel
"""


def generate(**kw):
    cfg = Cfg()
    for k, v in kw.items():
        assert hasattr(cfg, k), k
        setattr(cfg, k, v)
    return Gen(cfg).build()


if __name__ == "__main__":
    out = sys.argv[1]
    kw = {}
    for a in sys.argv[2:]:
        k, v = a.split("=")
        kw[k] = int(v)
    open(out, "w").write(generate(**kw))
```

```python
import sys, os
sys.path.insert(0, os.path.dirname(os.path.abspath(__file__)))
from asmlib import Asm, Alloc, vr, sr, interleave

NAME = "parallel_sum__linear_attn_block__dense_activation_squared_relu__prompt_kernel"

NSTEP_H, NSTEP = 86, 118
RT_STRIDE = NSTEP * 2048
WS_A2 = 0
WS_KVP = 32 * RT_STRIDE
WS_ZP = WS_KVP + 16 * 16 * 1024
WS_FLAG = WS_ZP + 16 * 16 * 128
WS_END = WS_FLAG + 80 * 128
WS_STAMP = 16 << 20

L_X, L_W, L_MISC = 0, 49152, 147456
L_R, L_MS, L_CS, L_FL, L_KVX = L_MISC, L_MISC + 512, L_MISC + 1024, L_MISC + 4096, L_MISC + 8192
LDS_BYTES = 163840

sWAVE, sI, sG, sTYPE, sRT, sCT, sW = 3, 26, 27, 28, 29, 30, 31
pX, pWQKV, pWO, pW1, pB1, pW2, pB2, pOUT, pDBG, pWS = 4, 6, 8, 12, 14, 16, 18, 20, 22, 24
sPOLL = 64
SPIN = 200000
STAMP_NAMES = {}


class Cfg:
    stamps = False
    rot1 = 1
    rot2 = 1
    ring = 5
    code_pf = True
    map2 = 0
    skip = ()
    probe = None
    amp = None
    ampcyc = 0
    psleep = 0
    fstride = 128


def srd(A, d, base, size):
    A(f"s_mov_b32 s{d}, s{base}")
    A(f"s_mov_b32 s{d+1}, s{base+1}")
    A(f"s_mov_b32 s{d+2}, {size}")
    A(f"s_mov_b32 s{d+3}, 0x20000")


class Gen:
    def __init__(self, cfg):
        self.cfg = cfg
        self.A = Asm()
        self.nlabel = 0
        self.vSTAMP = 255
        self.inL = False
        self.stamped = []

    def label(self, p):
        self.nlabel += 1
        return f"L_{p}_{self.nlabel}"

    def stamp(self, name, real=False):
        if self.inL and name == self.cfg.amp:
            self.A(("s_memtime" if self.cfg.ampcyc else "s_memrealtime") + " s[98:99]")
            self.A("s_waitcnt lgkmcnt(0)")
        if not self.cfg.stamps:
            return
        pool = [96, 98, 72, 74, 76, 78, 4, 6, 8, 10, 12, 14, 16, 18, 20, 22, 0] if self.inL else [96, 98] + list(range(52, 80, 2))
        if name in self.cfg.skip:
            return
        k = len(self.stamped)
        self.stamped.append((name, pool[k]))
        self.A(("s_memrealtime" if real else "s_memtime") + f" s[{pool[k]}:{pool[k]+1}]")

    def stamp_out(self, role):
        if not self.cfg.stamps:
            return
        A = self.A
        STAMP_NAMES[role] = [n for n, _ in self.stamped]
        A("s_waitcnt lgkmcnt(0)")
        A(f"v_mov_b32 v{self.vSTAMP}, 0")
        for k, (n, r) in enumerate(self.stamped):
            A(f"v_writelane_b32 v{self.vSTAMP}, s{r}, {k}")
        srd(A, 80, pWS, WS_STAMP + (1 << 20))
        A("s_lshl_b32 s100, s2, 3")
        A(f"s_add_u32 s100, s100, s{sWAVE}")
        A("s_lshl_b32 s100, s100, 8")
        A(f"s_add_u32 s100, s100, {WS_STAMP}")
        A("v_lshlrev_b32 v254, 2, v0")
        A(f"buffer_store_dword v{self.vSTAMP}, v254, s[80:83], s100 offen")

    def wait_flags(self, dSRD, sOff, vOff, vT):
        A = self.A
        lp, ok = self.label("fl"), self.label("flok")
        A(f"s_mov_b32 s80, {SPIN}")
        A(f"{lp}:")
        A(f"buffer_load_dword v{vT}, v{vOff}, s[{dSRD}:{dSRD+3}], s{sOff} offen sc1")
        A("s_sub_u32 s80, s80, 1")
        A(f"s_cbranch_scc1 {ok}")
        A("s_waitcnt vmcnt(0)")
        A(f"v_cmp_eq_u32 vcc, 0, v{vT}")
        A("s_cmp_eq_u64 vcc, 0")
        if self.cfg.psleep:
            A(f"s_cbranch_scc1 {ok}")
            A(f"s_sleep {self.cfg.psleep}")
            A(f"s_branch {lp}")
        else:
            A(f"s_cbranch_scc0 {lp}")
        A(f"{ok}:")

    def set_flag(self, sSRD, sOff, vOne):
        A = self.A
        A("s_mov_b64 exec, 1")
        A(f"buffer_store_dword v{vOne}, off, s[{sSRD}:{sSRD+3}], s{sOff} sc1")
        A("s_mov_b64 exec, -1")

    def lds_spin(self, vAddr, off, n, vT, reads):
        A = self.A
        lp, ok = self.label("ls"), self.label("lsok")
        A(f"s_mov_b32 s80, {SPIN}")
        A(f"{lp}:")
        A({1: "ds_read_b32", 4: "ds_read_b128"}[n] + f" {vr(vT, n)}, v{vAddr} offset:{off}")
        for x in reads:
            A(x)
        A("s_sub_u32 s80, s80, 1")
        A(f"s_cbranch_scc1 {ok}")
        A(f"s_waitcnt lgkmcnt({min(len(reads), 15)})")
        if n == 4:
            A(f"v_and_b32 v{vT}, v{vT}, v{vT+1}")
            A(f"v_and_b32 v{vT+2}, v{vT+2}, v{vT+3}")
            A(f"v_and_b32 v{vT}, v{vT}, v{vT+2}")
        A(f"v_readfirstlane_b32 s81, v{vT}")
        A("s_cmp_eq_u32 s81, 0")
        A("s_waitcnt lgkmcnt(0)")
        A(f"s_cbranch_scc1 {lp}")
        A(f"{ok}:")
        A("s_waitcnt lgkmcnt(0)")

    def entry(self):
        A = self.A
        A("s_cmp_ge_u32 s2, 256")
        A("s_cbranch_scc0 L_go")
        A("s_endpgm")
        A("L_go:")
        if self.cfg.amp:
            A(("s_memtime" if self.cfg.ampcyc else "s_memrealtime") + " s[96:97]")
        self.stamp("real0", real=True)
        self.stamp("entry")
        A("s_load_dwordx16 s[4:19], s[0:1], 0")
        A("s_load_dwordx4 s[20:23], s[0:1], 64")
        A("s_load_dwordx2 s[24:25], s[0:1], 80")
        A("v_lshrrev_b32 v1, 6, v0")
        A("v_and_b32 v0, 63, v0")
        A(f"v_readfirstlane_b32 s{sWAVE}, v1")
        A("s_and_b32 s80, s2, 1")
        A("s_bfe_u32 s81, s2, 0x20001")
        A("s_lshr_b32 s82, s2, 3")
        A(f"s_and_b32 s{sI}, s82, 7")
        A(f"s_lshl3_add_u32 s{sI}, s80, s{sI}")
        A(f"s_bfe_u32 s{sTYPE}, s82, 0x10003")
        A(f"s_lshr_b32 s{sG}, s82, 4")
        A(f"s_lshl1_add_u32 s{sG}, s81, s{sG}")
        if self.cfg.map2 == 0:
            A(f"s_and_b32 s{sRT}, s82, 3")
            A(f"s_lshl2_add_u32 s{sRT}, s81, s{sRT}")
            A(f"s_lshl4_add_u32 s{sRT}, s80, s{sRT}")
            A(f"s_lshr_b32 s{sCT}, s82, 2")
        else:
            A(f"s_bfe_u32 s84, s2, 0x10001")
            A(f"s_and_b32 s{sRT}, s82, 7")
            A(f"s_lshl3_add_u32 s{sRT}, s84, s{sRT}")
            A(f"s_lshl4_add_u32 s{sRT}, s80, s{sRT}")
            A(f"s_bfe_u32 s84, s2, 0x10002")
            A(f"s_lshr_b32 s{sCT}, s82, 3")
            A(f"s_lshl2_add_u32 s{sCT}, s84, s{sCT}")
        A(f"s_and_b32 s{sW}, s{sWAVE}, 3")
        A(f"s_mul_i32 s83, s{sG}, 5")
        A(f"s_min_u32 s84, s{sG}, 3")
        A("s_add_u32 s83, s83, s84")
        A(f"s_cmp_ge_u32 s{sWAVE}, 4")
        A("s_cbranch_scc0 L_C")

    def lwave(self):
        A, cfg = self.A, self.cfg
        self.inL = True
        dX, dW, dW2, dWO, dAH, dAO, dOUT, dB2, dFL, dDBG = 32, 36, 40, 44, 48, 52, 56, 60, 64, 68
        sSTR, sXB, sLX, sLW, sKX, sKW, sKS, sT, sS2, sSA, sFH, sFO = 84, 85, 86, 87, 88, 89, 90, 91, 92, 93, 94, 95
        al = Alloc(1, 254)
        acc = al(64, 4)
        NREG = 12
        breg = al(8 * NREG, 4)
        bwork = al(16, 4)
        R = cfg.ring
        aring = al(8 * (R + 1), 4)
        vtr = al(6)
        vW2a, vW2b, vA0, vA1, vO, vF, vP = al(), al(), al(), al(), al(), al(), al()
        vX = [aring + k for k in range(4)]
        vW = [aring + 4 + k for k in range(6)]
        t0, t1, t2, t3 = [aring + 10 + k for k in range(4)]
        vrow, vgsw = aring + 14, aring + 15

        A(f"v_lshrrev_b32 v{vrow}, 3, v0")
        A(f"v_and_b32 v{t0}, 7, v0")
        A(f"v_lshrrev_b32 v{t1}, 4, v0")
        A(f"v_xor_b32 v{t2}, v{t0}, v{t1}")
        A(f"v_lshlrev_b32 v{t2}, 4, v{t2}")
        A(f"v_lshl_add_u32 v{vX[0]}, v{vrow}, 10, v{t2}")
        A(f"v_xor_b32 v{vX[1]}, 0x2040, v{vX[0]}")
        A(f"v_add_u32 v{vX[2]}, 0x4000, v{vX[0]}")
        A(f"v_add_u32 v{vX[3]}, 0x4000, v{vX[1]}")
        A(f"v_and_b32 v{t1}, 1, v{t1}")
        A(f"v_lshlrev_b32 v{t1}, 2, v{t1}")
        A(f"v_xor_b32 v{t1}, v{t0}, v{t1}")
        A(f"v_lshlrev_b32 v{vgsw}, 4, v{t1}")
        A(f"s_cmp_eq_u32 s{sTYPE}, 0")
        A(f"s_movk_i32 s{sSTR}, 2752")
        A(f"s_cmovk_i32 s{sSTR}, 3072")
        A(f"s_lshl_b32 s80, s{sG}, 7")
        A("s_lshl_b32 s81, s83, 6")
        A(f"s_cmp_eq_u32 s{sTYPE}, 0")
        A("s_cselect_b32 s80, s80, s81")
        A("s_cselect_b32 s81, 0x400, 0")
        A("s_movk_i32 s82, 0x80")
        A("s_cmovk_i32 s82, 0x800")
        A(f"s_cselect_b32 s{sT}, 0, 0x100")
        A("s_add_u32 s81, s81, s80")
        A("s_add_u32 s82, s82, s80")
        A(f"s_add_u32 s80, s{sT}, s80")
        A(f"s_lshl_b32 s{sT}, s{sW}, 4")
        A(f"v_add_u32 v{t0}, s{sT}, v{vrow}")
        A(f"v_mul_u32_u24 v{t0}, s{sSTR}, v{t0}")
        A(f"v_add_u32 v{t0}, v{t0}, v{vgsw}")
        A(f"v_add_u32 v{vW[0]}, s81, v{t0}")
        A(f"v_add_u32 v{vW[1]}, s82, v{t0}")
        A(f"v_add_u32 v{vW[2]}, s80, v{t0}")
        A(f"s_cmp_ge_u32 s{sG}, 3")
        A(f"s_cselect_b32 s80, s{sTYPE}, 0")
        A("s_lshl_b32 s80, s80, 6")
        A(f"v_and_b32 v{t1}, s80, v{vgsw}")
        A(f"v_lshl_add_u32 v{vW[2]}, v{t1}, 24, v{vW[2]}")
        A(f"s_lshl_b32 s{sT}, s{sSTR}, 3")
        for u in range(3):
            A(f"v_add_u32 v{vW[3+u]}, s{sT}, v{vW[u]}")
        A(f"s_lshl_b32 s{sXB}, s{sI}, 2")
        A(f"s_add_u32 s{sXB}, s{sXB}, s{sW}")
        A(f"s_lshl_b32 s{sXB}, s{sXB}, 15")
        A(f"s_lshl_b32 s{sLX}, s{sW}, 12")
        A(f"s_mul_i32 s{sLW}, s{sW}, 6144")
        A(f"s_add_u32 s{sLW}, s{sLW}, {L_W}")
        A(f"s_lshl_b32 s{sSTR}, s{sSTR}, 6")
        if cfg.rot1 > 1:
            A(f"s_lshl1_add_u32 s80, s{sG}, s{sTYPE}")
            A(f"s_add_u32 s80, s80, s{sI}")
            A(f"s_and_b32 s80, s80, {cfg.rot1 - 1}")
            A(f"s_mul_i32 s{sKS}, s80, {8 // cfg.rot1}")
        else:
            A(f"s_mov_b32 s{sKS}, 0")
        A("s_waitcnt lgkmcnt(0)")
        srd(A, dX, pX, 2097152)
        A(f"s_cmp_eq_u32 s{sTYPE}, 0")
        A(f"s_cselect_b64 s[{dW}:{dW+1}], s[{pWQKV}:{pWQKV+1}], s[{pW1}:{pW1+1}]")
        A(f"s_mov_b32 s{dW+2}, 1409024")
        A(f"s_cmov_b32 s{dW+2}, 1572864")
        A(f"s_mov_b32 s{dW+3}, 0x20000")
        self.stamp("go")
        if cfg.probe:
            pp = cfg.probe.split(":")
            ptr, off, kb = int(pp[0]), int(pp[1]) << 20, int(pp[2])
            fl = pp[3] if len(pp) > 3 else ""
            srd(A, 72, ptr, 0x10000000 if ptr == pWS else 2097152)
            A(f"s_lshl2_add_u32 s80, s2, s{sW}")
            A(f"s_mul_i32 s80, s80, {kb * 1024}")
            A(f"s_add_u32 s80, s80, {off}")
            A(f"v_lshlrev_b32 v{acc}, 4, v0")
            A("s_memtime s[96:97]")
            A("s_waitcnt lgkmcnt(0)")
            for q in range(kb):
                if fl == "st":
                    A(f"buffer_store_dwordx4 {vr(breg, 4)}, v{acc}, s[72:75], s80 offen sc1")
                else:
                    A(f"buffer_load_dwordx4 {vr(breg + 4 * (q % 16), 4)}, v{acc}, s[72:75], s80 offen {fl}")
                A("s_add_u32 s80, s80, 1024")
            A("s_waitcnt vmcnt(0)")
            self.stamp("probe")

        def stage(s):
            slot = s % 3
            A(f"s_lshl_b32 s{sKX}, s{sKS}, 7")
            A(f"s_add_u32 s{sKX}, s{sKX}, s{sXB}")
            A(f"s_mul_i32 s{sKW}, s{sKS}, s{sSTR}")
            A(f"s_add_u32 s{sKS}, s{sKS}, 1")
            A(f"s_and_b32 s{sKS}, s{sKS}, 7")
            for n in range(4):
                A(f"s_add_u32 m0, s{sLX}, {slot * 16384 + n * 1024}")
                A(f"buffer_load_dwordx4 v{vX[n]}, s[{dX}:{dX+3}], s{sKX} offen lds")
            for rg in range(2):
                for u in range(3):
                    A(f"s_add_u32 m0, s{sLW}, {slot * 24576 + u * 2048 + rg * 1024}")
                    A(f"buffer_load_dwordx4 v{vW[3*rg+u]}, s[{dW}:{dW+3}], s{sKW} offen lds")

        stage(0)
        stage(1)
        srd(A, dW2, pW2, 1409024)
        srd(A, dWO, pWO, 524288)
        A(f"s_mul_i32 s80, s{sRT}, {RT_STRIDE}")
        A(f"s_add_u32 s{dAH}, s{pWS}, s80")
        A(f"s_addc_u32 s{dAH+1}, s{pWS+1}, 0")
        A(f"s_mov_b32 s{dAH+2}, {NSTEP_H * 2048}")
        A(f"s_mov_b32 s{dAH+3}, 0x20000")
        A(f"s_add_u32 s{dAO}, s{dAH}, {NSTEP_H * 2048}")
        A(f"s_addc_u32 s{dAO+1}, s{dAH+1}, 0")
        A(f"s_mov_b32 s{dAO+2}, {32 * 2048}")
        A(f"s_mov_b32 s{dAO+3}, 0x20000")
        srd(A, dOUT, pOUT, 2097152)
        srd(A, dB2, pB2, 1024)
        srd(A, dFL, pWS, WS_END)
        srd(A, dDBG, pDBG, 256)
        A(f"v_and_b32 v{vF}, 15, v0")
        A(f"v_lshlrev_b32 v{vF}, 2, v{vF}")
        A(f"s_lshl_b32 s{sFH}, s{sRT}, 7")
        A(f"s_add_u32 s{sFH}, s{sFH}, {WS_FLAG}")
        A(f"s_add_u32 s{sFO}, s{sFH}, {32 * 128}")
        A(f"s_lshl_b32 s80, s{sCT}, 7")
        A(f"v_lshl_add_u32 v{vW2a}, v{vrow}, 10, v{vgsw}")
        A(f"v_add_u32 v{vW2a}, s80, v{vW2a}")
        A(f"v_add_u32 v{vW2b}, {8192 - 1024}, v{vW2a}")
        A(f"v_lshrrev_b32 v{t0}, 5, v0")
        A(f"v_bfe_u32 v{t1}, v0, 2, 2")
        A(f"v_lshlrev_b32 v{t2}, 9, v{t0}")
        A(f"v_lshl_add_u32 v{t2}, v{t1}, 7, v{t2}")
        A(f"v_lshrrev_b32 v{t1}, 1, v{t1}")
        A(f"s_and_b32 s80, s{sW}, 1")
        A(f"v_xor_b32 v{t1}, s80, v{t1}")
        A(f"v_lshl_add_u32 v{t2}, v{t1}, 6, v{t2}")
        A(f"v_bfe_u32 v{t1}, v0, 4, 1")
        A(f"v_lshl_add_u32 v{t2}, v{t1}, 5, v{t2}")
        A(f"v_and_b32 v{t1}, 3, v0")
        A(f"v_lshl_add_u32 v{t2}, v{t1}, 3, v{t2}")
        A(f"v_xor_b32 v{t3}, 64, v{t2}")
        A(f"v_add_u32 v{vtr+0}, s{sLX}, v{t2}")
        A(f"v_add_u32 v{vtr+1}, s{sLX}, v{t3}")
        A(f"v_add_u32 v{vtr+2}, s{sLW}, v{t2}")
        A(f"v_add_u32 v{vtr+3}, s{sLW}, v{t3}")
        A(f"v_add_u32 v{vtr+4}, 49152, v{vtr+2}")
        A(f"v_add_u32 v{vtr+5}, 49152, v{vtr+3}")
        A(f"s_lshr_b32 s81, s{sW}, 1")
        A("s_lshl_b32 s82, s81, 10")
        A(f"v_lshl_add_u32 v{vA0}, v0, 4, s82")
        A(f"v_xor_b32 v{vA1}, 0x400, v{vA0}")
        A(f"s_lshl1_add_u32 s81, s{sRT}, s81")
        A("s_lshl_b32 s81, s81, 15")
        A(f"s_lshl1_add_u32 s80, s{sCT}, s80")
        A(f"s_lshl_b32 s{sT}, s80, 6")
        A(f"s_add_u32 s81, s81, s{sT}")
        A(f"v_and_b32 v{t1}, 31, v0")
        A(f"v_lshl_add_u32 v{vO}, v{t1}, 10, s81")
        if cfg.rot2 > 1:
            A(f"s_add_u32 s80, s{sRT}, s{sCT}")
            A(f"s_and_b32 s80, s80, {cfg.rot2 - 1}")
            A(f"s_mul_i32 s80, s80, {4 * (22 // cfg.rot2)}")
            A(f"s_add_u32 s80, s80, s{sW}")
        else:
            A(f"s_mov_b32 s80, s{sW}")
        A(f"s_lshl_b32 s{sS2}, s80, 14")
        A(f"s_lshl_b32 s{sSA}, s80, 11")

        for s in range(6):
            A("s_waitcnt vmcnt(10)")
            A("s_barrier")
            if s in (0, 2, 4):
                self.stamp(f"b{s}")
            if s == 5:
                A(f"buffer_load_dword v{vP}, off, s[{dDBG}:{dDBG+3}], 0 sc1")
            stage(s + 2)
        A("s_waitcnt vmcnt(10)")
        A(f"v_readfirstlane_b32 s81, v{vP}")
        A("s_cmp_lg_u32 s81, 0")
        A("s_cbranch_scc1 L_clr_ok")
        A(f"s_mov_b32 s80, {SPIN}")
        A("L_clr:")
        A(f"buffer_load_dword v{vP}, off, s[{dDBG}:{dDBG+3}], 0 sc1")
        A("s_sub_u32 s80, s80, 1")
        A("s_cbranch_scc1 L_clr_ok")
        A("s_waitcnt vmcnt(0)")
        A(f"v_readfirstlane_b32 s81, v{vP}")
        A("s_cmp_lg_u32 s81, 0")
        A("s_cbranch_scc0 L_clr")
        A("L_clr_ok:")
        A("s_barrier")
        self.stamp("b6")

        def slots_of(k):
            return [("X", k, 0), ("X", k, 1), ("W", k, 0), ("W", k, 1), ("W", k, 2)]
        free = [("W", 3, 0), ("W", 3, 1), ("W", 3, 2)] + slots_of(2)
        where = {}

        def lds_imm(sl):
            reg, k, idx = sl
            return k * 16384 + idx * 2048 if reg == "X" else k * 24576 + idx * 2048

        def issue_w2(n):
            sl = free.pop(0)
            where[n] = sl
            base = sLX if sl[0] == "X" else sLW
            d = dW2 if n < 22 else dWO
            if n == 22:
                A(f"s_lshl_b32 s{sS2}, s{sW}, 14")
            A(f"s_add_u32 m0, s{base}, {lds_imm(sl)}")
            A(f"buffer_load_dwordx4 v{vW2a}, s[{d}:{d+3}], s{sS2} offen lds")
            A(f"buffer_load_dwordx4 v{vW2b}, s[{d}:{d+3}], s{sS2} offen offset:1024 lds")
            A(f"s_add_u32 s{sS2}, s{sS2}, 0x10000")
            if cfg.rot2 > 1 and n < 21:
                A(f"s_cmp_ge_u32 s{sS2}, {88 << 14}")
                A(f"s_cselect_b32 s80, {88 << 14}, 0")
                A(f"s_sub_u32 s{sS2}, s{sS2}, s80")

        def tr_reads(n, dst):
            reg, k, idx = where[n]
            if reg == "X":
                a, imm = vtr, lds_imm(where[n])
            elif k < 2:
                a, imm = vtr + 2, lds_imm(where[n])
            else:
                a, imm = vtr + 4, lds_imm(where[n]) - 49152
            return [f"ds_read_b64_tr_b16 {vr(dst + 4 * nt + 2 * j, 2)}, v{a + nt} offset:{imm + 1024 * j}"
                    for nt in range(2) for j in range(2)]

        for n in range(4):
            issue_w2(n)
        A("s_waitcnt vmcnt(8)")
        A("s_barrier")
        self.stamp("b7")
        free.extend(slots_of(0))
        pending = None
        for n in range(4, 30):
            if pending is not None:
                A("s_waitcnt lgkmcnt(0)")
                free.append(pending); pending = None
            if not free:
                A(f"v_mov_b32 v{t0}, {L_FL}")
                self.lds_spin(t0, 0, 4, bwork, [])
                free.extend(slots_of(1))
            issue_w2(n)
            if n == 16:
                self.stamp("w2half")
            if n - 4 < NREG:
                A("s_waitcnt vmcnt(8)")
                for x in tr_reads(n - 4, breg + 8 * (n - 4)):
                    A(x)
                pending = where[n - 4]
        xr, br = acc + 16, acc + 24
        A(f"v_lshrrev_b32 v{t0}, 5, v0")
        A(f"v_lshl_add_u32 v{t1}, v{t0}, 3, v{vO}")
        A(f"v_lshl_add_u32 v{t2}, v{t0}, 3, s{sT}")
        A(f"v_lshl_add_u32 v{vO}, v{t0}, 4, v{vO}")
        for j in range(4):
            A(f"buffer_load_dwordx2 {vr(xr + 2 * j, 2)}, v{t1}, s[{dX}:{dX+3}], 0 offen offset:{16 * j}")
        for j in range(4):
            A(f"buffer_load_dwordx2 {vr(br + 2 * j, 2)}, v{t2}, s[{dB2}:{dB2+3}], 0 offen offset:{16 * j}")
        self.stamp("w2iss")
        self.wait_flags(dFL, sFH, vF, vP)
        self.stamp("hflag")

        def a_loads(n):
            b = aring + 8 * (n % (R + 1))
            d = dAH if n < 22 else dAO
            out = []
            if n == 22:
                out.append(f"s_lshl_b32 s{sSA}, s{sW}, 11")
            out.append(f"buffer_load_dwordx4 {vr(b, 4)}, v{vA0}, s[{d}:{d+3}], s{sSA} offen sc1")
            out.append(f"buffer_load_dwordx4 {vr(b + 4, 4)}, v{vA1}, s[{d}:{d+3}], s{sSA} offen sc1")
            out.append(f"s_add_u32 s{sSA}, s{sSA}, 0x2000")
            if cfg.rot2 > 1 and n < 21:
                out.append(f"s_cmp_ge_u32 s{sSA}, {88 << 11}")
                out.append(f"s_cselect_b32 s80, {88 << 11}, 0")
                out.append(f"s_sub_u32 s{sSA}, s{sSA}, s80")
            return out

        for n in range(R):
            for x in a_loads(n):
                A(x)
        A(f"s_waitcnt vmcnt({2 * R})")
        A("s_mov_b32 s82, 0xffff0000")
        for q in range(8):
            A(f"v_lshlrev_b32 v{acc + 2 * q}, 16, v{xr + q}")
            A(f"v_and_b32 v{acc + 2 * q + 1}, s82, v{xr + q}")
            A(f"v_lshlrev_b32 v{acc + 32 + 2 * q}, 16, v{br + q}")
            A(f"v_and_b32 v{acc + 33 + 2 * q}, s82, v{br + q}")
        for q in range(8):
            A(f"v_pk_add_f32 {vr(acc + 2 * q, 2)}, {vr(acc + 2 * q, 2)}, {vr(acc + 32 + 2 * q, 2)}")

        for n in range(30):
            nxt = n + R
            if nxt == 22:
                self.stamp("preO")
                self.wait_flags(dFL, sFO, vF, vP)
                self.stamp("oflag")
            loads = a_loads(nxt) if nxt < 30 else []
            for x in loads:
                A(x)
            left = min(R, 29 - n)
            bsrc = breg + 8 * n if n < NREG else bwork + 8 * (n % 2)
            A(f"s_waitcnt vmcnt({2 * left})" + (" lgkmcnt(0)" if n >= NREG else ""))
            b = aring + 8 * (n % (R + 1))
            mf = []
            for tt in range(2):
                for nt in range(2):
                    blk = acc + 16 * (nt + 2 * tt)
                    c = "0" if (n == 0 and blk != acc) else vr(blk, 16)
                    mf.append(f"v_mfma_f32_32x32x16_bf16 {vr(blk, 16)}, {vr(bsrc + 4 * nt, 4)}, {vr(b + 4 * tt, 4)}, {c}")
            if NREG <= n + 1 < 30:
                mf = interleave(mf, (tr_reads(n + 1, bwork + 8 * ((n + 1) % 2)), 0, 1))
            for x in mf:
                A(x)
        self.stamp("mfend")
        vr0 = t0
        A(f"v_lshl_add_u32 v{vr0}, v0, 4, s{sLX}")
        for blk in range(1, 4):
            for q in range(4):
                A(f"ds_write_b128 v{vr0}, {vr(acc + 16 * blk + 4 * q, 4)} offset:{(blk - 1) * 16384 + q * 1024}")
        for blk in range(1, 4):
            A(f"v_xor_b32 v{t0 + blk}, {blk << 12}, v{vr0}")
        A("s_waitcnt lgkmcnt(0)")
        A("s_barrier")
        for q in range(4):
            for blk in range(1, 4):
                A(f"ds_read_b128 {vr(breg + 16 * blk + 4 * q, 4)}, v{t0 + blk} offset:{(blk - 1) * 16384 + q * 1024}")
        pk = breg
        for q in range(4):
            A(f"s_waitcnt lgkmcnt({9 - 3 * q})")
            for blk in range(1, 4):
                for d in range(2):
                    a = acc + 4 * q + 2 * d
                    A(f"v_pk_add_f32 {vr(a, 2)}, {vr(a, 2)}, {vr(breg + 16 * blk + 4 * q + 2 * d, 2)}")
            for d in range(2):
                A(f"v_cvt_pk_bf16_f32 v{pk + 2 * q + d}, v{acc + 4 * q + 2 * d}, v{acc + 4 * q + 2 * d + 1}")
            if q % 2 == 1:
                p = pk + 2 * (q - 1)
                A(f"v_permlane32_swap_b32 v{p}, v{p + 2}")
                A(f"v_permlane32_swap_b32 v{p + 1}, v{p + 3}")
                A(f"buffer_store_dwordx4 {vr(p, 4)}, v{vO}, s[{dOUT}:{dOUT+3}], 0 offen offset:{16 * (q - 1)}")
        if cfg.stamps or cfg.amp:
            A("s_waitcnt vmcnt(0)")
            self.stamp("end")
            self.stamp("real1", real=True)
            self.stamp_out("L")
        if cfg.amp:
            A("s_sub_u32 s98, s98, s96")
            A("s_lshr_b32 s98, s98, 1" if cfg.ampcyc else "s_mul_i32 s98, s98, 10")
            A("s_min_u32 s98, s98, 200000")
            A("s_memrealtime s[96:97]")
            A("L_amp:")
            A("s_memrealtime s[100:101]")
            A("s_waitcnt lgkmcnt(0)")
            A("s_sub_u32 s100, s100, s96")
            A("s_cmp_lt_u32 s100, s98")
            A("s_cbranch_scc1 L_amp")
        A("s_endpgm")
        self.inL = False
        self.stamped = self.stamped[:2]

    def cwave(self):
        A, cfg = self.A, self.cfg
        dWS, dB1, dDBG = 32, 36, 40
        self.dWS = dWS
        sR, sC, sMASK, sEPS, sL2E, sA2, sFL, sPERM, sHI = 84, 85, 86, 88, 90, 92, 93, 94, 44
        self.sc = dict(sR=sR, sC=sC, sMASK=sMASK, sEPS=sEPS, sL2E=sL2E, sA2=sA2, sFL=sFL, sPERM=sPERM, sHI=sHI)
        al = Alloc(1, 254)
        V = self.V = {}
        V["acc"] = al(96, 4)
        V["fr"] = al(40, 4)
        V["cs"] = al(12, 4)
        V["sel"] = al(4, 4)
        V["aug"] = al(20, 4)
        V["perm"] = al(4, 4)
        V["ones"] = al(4, 4)
        V["rT"] = al(32, 4)
        V["xa"] = al(8)
        V["wa"] = al(4)
        V["st"] = al(4)
        V["t"] = al(8, 4)
        V["r"] = al(4, 2)
        V["b1"] = al(3)
        V["tok"] = al(2)
        V["l16"] = al(1)
        V["one"] = al(1)
        V["fl"] = al(1)
        t = V["t"]
        A("L_C:")
        if cfg.code_pf:
            A("s_getpc_b64 s[80:81]")
            A("L_pc:")
            A(f"s_sub_u32 s80, s80, L_pc-{NAME}")
            A("s_subb_u32 s81, s81, 0")
            A("s_lshr_b32 s82, s2, 3")
            A(f"s_lshl2_add_u32 s82, s82, s{sW}")
            A(f"v_and_b32 v{t}, 3, v0")
            A(f"v_lshl_add_u32 v{t}, v{t}, 7, s82")
            A(f"v_lshlrev_b32 v{t}, 7, v{t}")
            A(f"v_min_u32 v{t}, L_end-{NAME}-4, v{t}")
            A("s_mov_b64 exec, 15")
            A(f"global_load_dword v{V['rT']}, v{t}, s[80:81]")
            A("s_mov_b64 exec, -1")
        A(f"s_lshr_b32 s{sR}, s{sW}, 1")
        A(f"s_and_b32 s{sC}, s{sW}, 1")
        A(f"s_mov_b32 s{sMASK}, 0xffff0000")
        A(f"s_mov_b32 s{sEPS}, 0x358637bd")
        A(f"s_mov_b32 s{sEPS+1}, 0x358637bd")
        A(f"s_mov_b32 s{sL2E}, 0x3fb8aa3b")
        A(f"s_mov_b32 s{sL2E+1}, 0x3fb8aa3b")
        A(f"s_mov_b32 s{sPERM}, 0x07060302")
        A(f"s_mov_b32 s{sHI}, 0xffff0000")
        A(f"s_mov_b32 s{sHI+1}, 0xffff0000")
        A(f"v_and_b32 v{t}, 31, v0")
        A(f"v_lshrrev_b32 v{t+1}, 5, v0")
        A(f"s_lshl_b32 s80, s{sW}, 5")
        A(f"v_add_u32 v{t+2}, s80, v{t}")
        A(f"v_lshlrev_b32 v{V['tok']}, 2, v{t+2}")
        A(f"v_add_u32 v{V['tok']}, {L_MISC}, v{V['tok']}")
        A(f"v_xor_b32 v{V['tok']+1}, 0x80, v{V['tok']}")
        A(f"v_bfe_u32 v{t+3}, v0, 1, 3")
        A(f"v_xor_b32 v{t+3}, v{t+3}, v{t+1}")
        A(f"s_lshl_b32 s80, s{sR}, 1")
        A(f"v_xor_b32 v{t+3}, s80, v{t+3}")
        A(f"v_lshlrev_b32 v{t+3}, 4, v{t+3}")
        A(f"v_lshl_add_u32 v{V['xa']}, v{t+2}, 7, v{t+3}")
        for p in range(1, 4):
            A(f"v_xor_b32 v{V['xa']+2*p}, {32 * p}, v{V['xa']}")
        for p in range(4):
            A(f"v_xor_b32 v{V['xa']+2*p+1}, 0x1000, v{V['xa']+2*p}")
        A(f"v_bfe_u32 v{t+2}, v0, 2, 2")
        A(f"v_lshlrev_b32 v{t+3}, 10, v{t+1}")
        A(f"v_lshl_add_u32 v{t+3}, v{t+2}, 7, v{t+3}")
        A(f"v_lshrrev_b32 v{t+2}, 1, v{t+2}")
        A(f"v_xor_b32 v{t+2}, s{sC}, v{t+2}")
        A(f"v_lshl_add_u32 v{t+3}, v{t+2}, 6, v{t+3}")
        A(f"v_bfe_u32 v{t+2}, v0, 4, 1")
        A(f"v_lshl_add_u32 v{t+3}, v{t+2}, 5, v{t+3}")
        A(f"v_and_b32 v{t+2}, 3, v0")
        A(f"v_lshl_add_u32 v{t+3}, v{t+2}, 3, v{t+3}")
        A(f"s_mul_i32 s80, s{sR}, 6144")
        A(f"s_sub_u32 s81, {L_W}, s80")
        A(f"s_add_u32 s80, s80, {L_W}")
        A(f"v_add_u32 v{V['wa']}, s80, v{t+3}")
        A(f"v_add_u32 v{V['wa']+1}, s81, v{t+3}")
        A(f"v_add_u32 v{V['wa']+2}, 49152, v{V['wa']}")
        A(f"v_add_u32 v{V['wa']+3}, 49152, v{V['wa']+1}")
        A(f"v_lshrrev_b32 v{t+2}, 4, v0")
        A(f"v_bfe_u32 v{t+3}, v0, 2, 2")
        A(f"v_mov_b32 v{V['ones']}, 0x3f803f80")
        A(f"v_cmp_eq_u32 vcc, v{t+2}, v{t+3}")
        for q in range(1, 4):
            A(f"v_mov_b32 v{V['ones']+q}, v{V['ones']}")
        for q in range(4):
            A(f"v_cndmask_b32 v{V['sel']+q}, 0, v{V['ones']}, vcc")
        for q in range(5):
            A(f"v_mov_b32 v{V['aug']+4*q+2}, 0")
            A(f"v_mov_b32 v{V['aug']+4*q+3}, 0")
        for q in range(4):
            A(f"v_mov_b32 v{V['st']+q}, 0")
        A(f"v_lshlrev_b32 v{V['l16']}, 4, v0")
        A(f"v_mov_b32 v{V['one']}, 1")
        A(f"v_mov_b32 v{V['fl']}, {L_FL}")
        A(f"v_lshlrev_b32 v{t+2}, 2, v0")
        A(f"v_add_u32 v{t+2}, {L_FL}, v{t+2}")
        A(f"ds_write_b32 v{t+2}, v{V['st']}")
        A("s_waitcnt lgkmcnt(0)")
        srd(A, dWS, pWS, WS_END)
        A(f"s_lshl1_add_u32 s80, s{sI}, s{sR}")
        A(f"s_mul_i32 s{sA2}, s80, {RT_STRIDE}")
        A(f"s_lshl_b32 s{sFL}, s80, 5")
        A(f"s_lshl1_add_u32 s81, s{sG}, s{sC}")
        A(f"s_add_u32 s{sFL}, s{sFL}, s81")
        A(f"s_lshl_b32 s{sFL}, s{sFL}, 2")
        A(f"s_add_u32 s{sFL}, s{sFL}, {WS_FLAG}")
        A(f"s_lshl3_add_u32 s80, s2, s{sWAVE}")
        A("s_cmp_eq_u32 s80, 1")
        A("s_cbranch_scc0 L_noclr")
        srd(A, dDBG, pDBG, 256)
        z = V["rT"] + 4
        for q in range(4):
            A(f"v_mov_b32 v{z+q}, 0")
        A(f"s_mov_b32 s80, {WS_FLAG}")
        for q in range(10):
            A(f"buffer_store_dwordx4 {vr(z, 4)}, v{V['l16']}, s[{dWS}:{dWS+3}], s80 offen sc1")
            A("s_add_u32 s80, s80, 0x400")
        A("s_waitcnt vmcnt(0)")
        A("s_mov_b32 s80, 0")
        self.set_flag(dDBG, 80, V["one"])
        A("L_noclr:")
        A(f"s_cmp_eq_u32 s{sTYPE}, 0")
        A("s_cbranch_scc1 L_attn")
        srd(A, dB1, pB1, 2752)
        A(f"s_add_u32 s80, s83, s{sC}")
        A("s_lshl_b32 s81, s80, 12")
        A(f"s_add_u32 s{sA2}, s{sA2}, s81")
        A("s_lshl_b32 s80, s80, 6")
        A(f"v_lshlrev_b32 v{t+2}, 1, v{t}")
        A(f"v_lshl_add_u32 v{t+2}, v{t+1}, 20, v{t+2}")
        for u in range(3):
            A(f"buffer_load_ushort v{V['b1']+u}, v{t+2}, s[{dB1}:{dB1+3}], s80 offen offset:{128 * u}")
        self.kloop(False)
        self.mlp_tail()
        A("L_attn:")
        for u in range(3):
            A(f"v_mov_b32 v{V['b1']+u}, 0")
        A(f"v_bfe_u32 v{t+2}, v0, 2, 1")
        A(f"v_xor_b32 v{t+2}, v{t+2}, v{t+1}")
        A(f"v_bfe_u32 v{t+3}, v0, 4, 1")
        A(f"v_or_b32 v{t+2}, v{t+2}, v{t+3}")
        A(f"v_bfe_u32 v{t+3}, v0, 3, 1")
        A(f"v_lshl_add_u32 v{t+2}, v{t+2}, 1, v{t+3}")
        A(f"v_bfe_u32 v{t+3}, v0, 1, 1")
        A(f"v_lshl_add_u32 v{t+2}, v{t+2}, 1, v{t+3}")
        A(f"v_and_b32 v{t+3}, 1, v0")
        A(f"v_lshlrev_b32 v{t+3}, 4, v{t+3}")
        A(f"v_mov_b32 v{t+4}, 0x3f80")
        A(f"v_lshlrev_b32 v{t+3}, v{t+3}, v{t+4}")
        for q in range(4):
            A(f"v_cmp_eq_u32 vcc, {q}, v{t+2}")
            A(f"v_cndmask_b32 v{V['perm']+q}, 0, v{t+3}, vcc")
        self.kloop(True)
        self.attn_tail()

    def kloop(self, attn):
        A, V, sc = self.A, self.V, self.sc
        acc, fr, cs, st, t = V["acc"], V["fr"], V["cs"], V["st"], V["t"]

        def reads(n):
            s, p = divmod(n, 4)
            slot = s % 3
            f = fr + 20 * (n % 2)
            wa = V["wa"] + (p & 1) + (2 if slot == 2 else 0)
            wi = (0 if slot == 2 else slot * 24576) + p * 6144
            x = [f"ds_read_b128 {vr(f + 4 * a, 4)}, v{V['xa'] + 2 * p + a} offset:{slot * 16384}" for a in range(2)]
            w = [f"ds_read_b64_tr_b16 {vr(f + 8 + 4 * u + 2 * j, 2)}, v{wa} offset:{wi + u * 2048 + j * 512}"
                 for u in range(3) for j in range(2)]
            return [x[0]] + w[:2] + [x[1]] + w[2:]

        def mfma(dst, xf, wf, u, c):
            a, b = (xf, wf) if (attn and u < 2) else (wf, xf)
            return f"v_mfma_f32_32x32x16_bf16 {vr(dst, 16)}, {vr(a, 4)}, {vr(b, 4)}, {c}"
        self.mfma1 = mfma

        self.stamp("rdy")
        A("s_barrier")
        self.stamp("b0")
        for x in reads(0):
            A(x)
        for n in range(32):
            s, p = divmod(n, 4)
            f = fr + 20 * (n % 2)
            A("s_waitcnt lgkmcnt(0)")
            if p == 3 and s < 7:
                A("s_barrier")
            prim = []
            for u in range(3):
                for a in range(2):
                    d = acc + 16 * (2 * u + a)
                    prim.append(mfma(d, f + 4 * a, f + 8 + 4 * u, u, "0" if n == 0 else vr(d, 16)))
                if p % 2 == 0:
                    d = cs + 4 * u
                    prim[-1] += f"\nv_mfma_f32_16x16x32_bf16 {vr(d, 4)}, {vr(V['sel'], 4)}, {vr(f + 8 + 4 * u, 4)}, " + ("0" if n == 0 else vr(d, 4))
            va = []
            for q in range(4):
                a, b = t + 2 * (q % 2), t + 2 * (q % 2) + 1
                va.append(f"v_lshlrev_b32 v{a}, 16, v{f + q}\nv_and_b32 v{b}, s{sc['sMASK']}, v{f + q}")
                va.append(f"v_add_f32 v{st}, v{st}, v{a}\nv_add_f32 v{st+1}, v{st+1}, v{b}")
                va.append(f"v_fmac_f32 v{st+2}, v{a}, v{a}\nv_fmac_f32 v{st+3}, v{b}, v{b}")
            if n < 31:
                seq = interleave(prim, (reads(n + 1), 0, 3), (va, 0, 5))
            else:
                seq = interleave(prim, (va, 0, 2), (self.stats_final(), 3, 5))
            for x in seq:
                A(x)
        self.stamp("T1")
        tok = V["tok"]
        ms, r0, r1 = V["aug"] + 1, V["r"], V["r"] + 2
        A(f"ds_write_b32 v{tok}, v{r0} offset:0")
        A(f"ds_write_b32 v{tok}, v{ms} offset:512")
        A(f"s_mul_i32 s80, s{sW}, 768")
        A(f"s_add_u32 s80, s80, {L_CS}")
        A(f"v_lshl_add_u32 v{t}, v0, 2, s80")
        A(f"s_xor_b32 s81, s{sW}, 2")
        A("s_mul_i32 s81, s81, 768")
        A(f"s_add_u32 s81, s81, {L_CS}")
        A(f"v_lshl_add_u32 v{t+1}, v0, 2, s81")
        for u in range(3):
            A(f"ds_write_b32 v{t}, v{cs + 4 * u} offset:{256 * u}")
        A(f"s_lshl_b32 s80, s{sW}, 2")
        A(f"v_add_u32 v{t+2}, s80, v{V['fl']}")
        A(f"ds_write_b32 v{t+2}, v{V['one']}")
        rd = [f"ds_read_b32 v{cs + 4 * u + 1}, v{t+1} offset:{256 * u}" for u in range(3)]
        rd.append(f"ds_read_b32 v{V['aug'] + 5}, v{tok+1} offset:512")
        rd.append(f"ds_read_b32 v{r1}, v{tok+1} offset:0")
        if attn:
            A(f"v_lshrrev_b32 v{t+2}, 5, v0")
            A(f"s_lshl_b32 s80, s{sW}, 7")
            A(f"s_add_u32 s80, s80, {L_R}")
            A(f"v_lshl_add_u32 v{t+2}, v{t+2}, 4, s80")
            A(f"v_xor_b32 v{t+3}, 0x80, v{t+2}")
            rd += [f"ds_read_b128 {vr(V['rT'] + 16 * a + 4 * j, 4)}, v{t + 2 + a} offset:{32 * j}" for a in range(2) for j in range(4)]
        A("s_waitcnt vmcnt(0)")
        self.lds_spin(V["fl"], 0, 4, t + 4, rd)
        self.stamp("xch")
        for a in range(2):
            A(f"v_perm_b32 v{V['aug'] + 4 * a}, v{V['aug'] + 4 * a + 1}, v{V['aug'] + 4 * a + 1}, s{sc['sPERM'] + 1}")
        for u in range(3):
            A(f"v_add_f32 v{cs + 4 * u}, v{cs + 4 * u}, v{cs + 4 * u + 1}")
        for u in range(3):
            A(f"v_and_b32 v{cs + 4 * u + 1}, s{sc['sMASK']}, v{cs + 4 * u}")
        for u in range(3):
            A(f"v_sub_f32 v{cs + 4 * u + 1}, v{cs + 4 * u}, v{cs + 4 * u + 1}")
        for u in range(3):
            A(f"v_perm_b32 v{V['aug'] + 8 + 4 * u}, v{cs + 4 * u + 1}, v{cs + 4 * u}, s{sc['sPERM']}")
            A(f"v_and_b32 v{cs + 4 * u + 2}, s{sc['sMASK']}, v{cs + 4 * u + 1}")
        for u in range(3):
            A(f"v_sub_f32 v{cs + 4 * u + 2}, v{cs + 4 * u + 1}, v{cs + 4 * u + 2}")
        for u in range(3):
            A(f"v_lshrrev_b32 v{cs + 4 * u + 2}, 16, v{cs + 4 * u + 2}")
        for u in range(3):
            A(f"v_lshl_or_b32 v{V['aug'] + 9 + 4 * u}, v{V['b1'] + u}, 16, v{cs + 4 * u + 2}")
        for u in range(3):
            for a in range(2):
                d = acc + 16 * (2 * u + a)
                A(mfma(d, V["aug"] + 4 * a, V["aug"] + 8 + 4 * u, u, vr(d, 16)))
        self.stamp("aug")

    def stats_final(self):
        V, sc = self.V, self.sc
        st, t = V["st"], V["t"]
        ms, r0 = V["aug"] + 1, V["r"]
        return [
            f"v_add_f32 v{st}, v{st}, v{st+1}\nv_add_f32 v{st+2}, v{st+2}, v{st+3}",
            f"v_mov_b32 v{st+1}, v{st}\nv_mov_b32 v{st+3}, v{st+2}",
            f"s_mov_b32 s{sc['sPERM']+1}, 0x01000100",
            f"v_permlane32_swap_b32 v{st}, v{st+1}\nv_permlane32_swap_b32 v{st+2}, v{st+3}",
            f"v_add_f32 v{st}, v{st}, v{st+1}\nv_add_f32 v{st+2}, v{st+2}, v{st+3}",
            f"v_mul_f32 v{st}, 0xbb000000, v{st}",
            f"v_mul_f32 v{st+2}, 0x3b000000, v{st+2}",
            f"v_fma_f32 v{st+2}, -v{st}, v{st}, v{st+2}",
            f"v_max_f32 v{st+2}, 0, v{st+2}",
            f"v_cvt_pk_bf16_f32 v{t}, v{st+2}, v{st+2}",
            f"v_and_b32 v{t}, s{sc['sMASK']}, v{t}",
            f"v_add_f32 v{t}, 0x3727c5ac, v{t}",
            f"v_cvt_pk_bf16_f32 v{t}, v{t}, v{t}",
            f"v_and_b32 v{t}, s{sc['sMASK']}, v{t}",
            f"v_sqrt_f32 v{t}, v{t}",
            f"v_cvt_pk_bf16_f32 v{ms}, v{st}, v{t}",
            f"v_and_b32 v{t}, s{sc['sMASK']}, v{ms}",
            f"v_rcp_f32 v{r0}, v{t}",
        ]

    def mlp_tail(self):
        A, V, sc = self.A, self.V, self.sc
        acc, t, dWS = V["acc"], V["t"], self.dWS
        A(f"s_lshl_b32 s80, s{sc['sC']}, 10")
        A(f"v_add_u32 v{t}, s80, v{V['l16']}")
        A(f"v_xor_b32 v{t+1}, 0x400, v{t}")
        for u in range(3):
            if u == 2:
                A(f"s_cmp_ge_u32 s{sG}, 3")
                A(f"s_cselect_b32 s80, s{sc['sC']}, 0")
                A("s_cmp_eq_u32 s80, 1")
                A("s_cbranch_scc1 L_mlp_done")
            for a in range(2):
                d = acc + 16 * (2 * u + a)
                pk = V["fr"] + 8 * a
                for q in range(8):
                    A(f"v_pk_mul_f32 {vr(d + 2 * q, 2)}, {vr(d + 2 * q, 2)}, {vr(V['r'] + 2 * a, 2)} op_sel_hi:[1,0]")
                for q in range(16):
                    A(f"v_max_f32 v{d + q}, 0, v{d + q}")
                for q in range(8):
                    A(f"v_pk_mul_f32 {vr(d + 2 * q, 2)}, {vr(d + 2 * q, 2)}, {vr(d + 2 * q, 2)}")
                for s in range(2):
                    for q in range(4 * s, 4 * s + 4):
                        A(f"v_cvt_pk_bf16_f32 v{pk + q}, v{d + 2 * q}, v{d + 2 * q + 1}")
                    A(f"buffer_store_dwordx4 {vr(pk + 4 * s, 4)}, v{t + a}, s[{dWS}:{dWS+3}], s{sc['sA2']} offen offset:{2048 * s} sc1")
            A(f"s_add_u32 s{sc['sA2']}, s{sc['sA2']}, 0x2000")
        A("L_mlp_done:")
        self.stamp("stored")
        A("s_waitcnt vmcnt(0)")
        self.set_flag(dWS, sc["sFL"], V["one"])
        self.stamp("flag")
        self.stamp_out("mlp")
        A("s_endpgm")
        self.stamped = self.stamped[:2]

    def phi(self, d, rsrc, pk, tmp):
        A, sc = self.A, self.sc
        e, l = sr(sc["sEPS"], 2), sr(sc["sL2E"], 2)
        for q in range(8):
            A(f"v_pk_fma_f32 {vr(d + 2 * q, 2)}, {vr(d + 2 * q, 2)}, {rsrc(q)[0]}, {e}{rsrc(q)[1]}")
        for q in range(8):
            A(f"v_pk_mul_f32 {vr(tmp + 2 * q, 2)}, {vr(d + 2 * q, 2)}, {l}")
        for q in range(16):
            A(f"v_exp_f32_e64 v{tmp + q}, v{tmp + q} clamp")
            A(f"v_max_f32_e64 v{d + q}, s{sc['sEPS']}, v{d + q}")
        for q in range(8):
            A(f"v_pk_add_f32 {vr(d + 2 * q, 2)}, {vr(d + 2 * q, 2)}, {vr(tmp + 2 * q, 2)}")
        for q in range(8):
            A(f"v_cvt_pk_bf16_f32 v{pk + q}, v{d + 2 * q}, v{d + 2 * q + 1}")

    def attn_tail(self):
        A, V, sc = self.A, self.V, self.sc
        acc, t, dWS, fr, rT = V["acc"], V["t"], self.dWS, V["fr"], V["rT"]
        sR, sC, sHI = sc["sR"], sc["sC"], sc["sHI"]
        hi = sr(sHI, 2)
        tmp = V["cs"]
        pkf, vf = fr, fr + 16
        for a in range(2):
            self.phi(acc + 16 * a, lambda q: (vr(rT + 16 * a + 2 * q, 2), ""), pkf + 8 * a, tmp)
            d = acc + 32 + 16 * a
            for q in range(8):
                A(f"v_pk_mul_f32 {vr(d + 2 * q, 2)}, {vr(d + 2 * q, 2)}, {vr(rT + 16 * a + 2 * q, 2)}")
            for q in range(8):
                A(f"v_cvt_pk_bf16_f32 v{vf + 8 * a + q}, v{d + 2 * q}, v{d + 2 * q + 1}")
        D1, D2 = acc, acc + 16
        for k in range(4):
            A(f"v_mfma_f32_32x32x16_bf16 {vr(D1, 16)}, {vr(pkf + 4 * k, 4)}, {vr(vf + 4 * k, 4)}, " + ("0" if k == 0 else vr(D1, 16)))
            A(f"v_mfma_f32_32x32x16_bf16 {vr(D2, 16)}, {vr(pkf + 4 * k, 4)}, {vr(V['ones'], 4)}, " + ("0" if k == 0 else vr(D2, 16)))
        sPG, sKV, sZ, sFK = 46, 47, 48, 49
        A(f"s_lshl1_add_u32 s{sPG}, s{sG}, s{sC}")
        A(f"s_lshl4_add_u32 s80, s{sPG}, s{sI}")
        A(f"s_lshl_b32 s{sKV}, s80, 10")
        A(f"s_add_u32 s{sKV}, s{sKV}, {WS_KVP}")
        A(f"s_lshl_b32 s{sZ}, s80, 7")
        A(f"s_add_u32 s{sZ}, s{sZ}, {WS_ZP}")
        A(f"s_lshl_b32 s{sFK}, s{sPG}, 7")
        A(f"s_add_u32 s{sFK}, s{sFK}, {WS_FLAG + 64 * 128}")
        A(f"s_lshl_b32 s80, s{sC}, 12")
        A(f"s_add_u32 s80, s80, {L_KVX}")
        vx, vfl = t, t + 1
        A(f"v_add_u32 v{vx}, s80, v{V['l16']}")
        A(f"s_lshl_b32 s80, s{sC}, 2")
        A(f"v_add_u32 v{vfl}, s80, v{V['fl']}")
        A(f"v_lshrrev_b32 v{t+2}, 4, v0")
        A(f"v_lshlrev_b32 v{t+2}, 5, v{t+2}")
        KV, Z = acc + 32, acc + 40
        for e in range(8):
            A(f"v_cndmask_b32 v{KV + e}, v{D1 + e}, v{D1 + 8 + e}, {hi}")
        for e in range(8):
            A(f"v_cndmask_b32 v{Z + e}, v{D2 + 8 + e}, v{D2 + e}, {hi}")
        A(f"s_cmp_eq_u32 s{sR}, 0")
        A("s_cbranch_scc1 L_kv_r0")
        for q in range(4):
            A(f"ds_write_b128 v{vx}, {vr(KV + 4 * q, 4)} offset:{1024 * q}")
        A(f"ds_write_b32 v{vfl}, v{V['one']} offset:16")
        A("s_branch L_kv_join")
        A("L_kv_r0:")
        o = acc + 48
        self.lds_spin(vfl, 16, 1, t + 4, [f"ds_read_b128 {vr(o + 4 * q, 4)}, v{vx} offset:{1024 * q}" for q in range(4)])
        for q in range(8):
            A(f"v_pk_add_f32 {vr(KV + 2 * q, 2)}, {vr(KV + 2 * q, 2)}, {vr(o + 2 * q, 2)}")
        for q in range(4):
            A(f"v_cvt_pk_bf16_f32 v{o + q}, v{KV + 2 * q}, v{KV + 2 * q + 1}")
        A(f"buffer_store_dwordx4 {vr(o, 4)}, v{V['l16']}, s[{dWS}:{dWS+3}], s{sKV} offen sc1")
        A("s_mov_b32 exec_lo, 0x00010001")
        A("s_mov_b32 exec_hi, 0x00010001")
        for q in range(2):
            A(f"buffer_store_dwordx4 {vr(Z + 4 * q, 4)}, v{t+2}, s[{dWS}:{dWS+3}], s{sZ} offen offset:{16 * q} sc1")
        A("s_mov_b64 exec, -1")
        A("L_kv_join:")
        self.stamp("kvst")
        pq = fr
        for a in range(2):
            self.phi(acc + 64 + 16 * a, lambda q: (vr(V["r"] + 2 * a, 2), " op_sel_hi:[1,0,1]"), pq + 8 * a, tmp)
        A(f"s_cmp_eq_u32 s{sR}, 0")
        A("s_cbranch_scc0 L_kv_noflag")
        A("s_waitcnt vmcnt(0)")
        A(f"s_lshl2_add_u32 s80, s{sI}, s{sFK}")
        self.set_flag(dWS, 80, V["one"])
        A("L_kv_noflag:")
        self.stamp("kvflag")
        A(f"s_lshl1_add_u32 s80, s{sPG}, s{sR}")
        A(f"s_lshl_b32 s{sKV}, s80, 13")
        A(f"s_add_u32 s{sKV}, s{sKV}, {WS_KVP}")
        A(f"s_add_u32 s50, s{sKV}, 0x1000")
        A(f"s_lshl_b32 s{sZ}, s{sPG}, 11")
        A(f"s_add_u32 s{sZ}, s{sZ}, {WS_ZP}")
        A(f"v_and_b32 v{t+3}, 15, v0")
        A(f"v_lshl_add_u32 v{t+2}, v{t+3}, 7, v{t+2}")
        A(f"s_lshl_b32 s80, s{sR}, 11")
        A(f"v_add_u32 v{vx}, s80, v{vx}")
        A(f"v_xor_b32 v{t+3}, 0x800, v{vx}")
        A(f"s_lshl_b32 s80, s{sW}, 2")
        A(f"v_add_u32 v{vfl}, s80, v{V['fl']}")
        A(f"v_xor_b32 v{V['st']}, 8, v{vfl}")
        A(f"s_lshl_b32 s80, s{sPG}, 12")
        A(f"s_add_u32 s{sc['sA2']}, s{sc['sA2']}, s80")
        A(f"s_add_u32 s{sc['sA2']}, s{sc['sA2']}, {NSTEP_H * 2048}")
        A(f"s_add_u32 s{sc['sFL']}, s{sc['sFL']}, {32 * 128}")
        A(f"s_lshl_b32 s80, s{sC}, 10")
        A(f"v_add_u32 v{V['st']+2}, s80, v{V['l16']}")
        A(f"v_xor_b32 v{V['st']+3}, 0x400, v{V['st']+2}")
        A(f"v_and_b32 v{t+4}, 15, v0")
        A(f"v_lshlrev_b32 v{t+4}, 2, v{t+4}")
        self.wait_flags(dWS, sFK, t + 4, t + 5)
        self.stamp("kvseen")
        part = acc + 48
        for q in range(2):
            A(f"buffer_load_dwordx4 {vr(Z + 4 * q, 4)}, v{t+2}, s[{dWS}:{dWS+3}], s{sZ} offen offset:{16 * q} sc1")
        for p in range(8):
            A(f"buffer_load_dwordx4 {vr(part + 4 * p, 4)}, v{V['l16']}, s[{dWS}:{dWS+3}], s{sKV if p < 4 else 50} offen offset:{1024 * (p % 4)} sc1")
        A("s_waitcnt vmcnt(8)")
        for sh in (8, 4, 2, 1):
            for e in range(8):
                A(f"v_add_f32_dpp v{Z + e}, v{Z + e}, v{Z + e} row_ror:{sh} row_mask:0xf bank_mask:0xf")
        for p in range(8):
            A(f"s_waitcnt vmcnt({7 - p})")
            A(f"v_mfma_f32_32x32x16_bf16 {vr(D1, 16)}, {vr(V['perm'], 4)}, {vr(part + 4 * p, 4)}, " + ("0" if p == 0 else vr(D1, 16)))
        self.stamp("kvld")
        Zb, KVb, op0, op1 = tmp, tmp + 4, tmp + 8, tmp + 12
        for q in range(4):
            A(f"v_cvt_pk_bf16_f32 v{Zb + q}, v{Z + 2 * q}, v{Z + 2 * q + 1}")
        for q in range(2):
            A(f"ds_write_b128 v{vx}, {vr(D1 + 4 * q, 4)} offset:{1024 * q}")
        A(f"ds_write_b32 v{vfl}, v{V['one']} offset:32")
        self.lds_spin(V["st"], 32, 1, t + 4, [f"ds_read_b128 {vr(KV + 4 * q, 4)}, v{t+3} offset:{1024 * q}" for q in range(2)])
        for q in range(4):
            A(f"v_pk_add_f32 {vr(KV + 2 * q, 2)}, {vr(KV + 2 * q, 2)}, {vr(D1 + 2 * q, 2)}")
        for q in range(4):
            A(f"v_cvt_pk_bf16_f32 v{KVb + q}, v{KV + 2 * q}, v{KV + 2 * q + 1}")
        for q in range(4):
            A(f"v_cndmask_b32 v{op0 + q}, v{KVb + q}, v{Zb + q}, {hi}")
        for q in range(4):
            A(f"v_cndmask_b32 v{op1 + q}, v{Zb + q}, v{KVb + q}, {hi}")
        for a in range(2):
            for s in range(2):
                d = acc + 16 * (2 * a + s)
                A(f"v_mfma_f32_32x32x16_bf16 {vr(d, 16)}, {vr(op0 + 4 * s, 4)}, {vr(pq + 8 * a + 4 * s, 4)}, 0")
        ob = fr + 16
        for a in range(2):
            for s in range(2):
                d = acc + 16 * (2 * a + s)
                num, den = (d, d + 8) if s == 0 else (d + 8, d)
                A(f"v_add_f32 v{den}, s{sc['sEPS']}, v{den}")
                A(f"v_rcp_f32 v{den}, v{den}")
                for q in range(4):
                    A(f"v_pk_mul_f32 {vr(num + 2 * q, 2)}, {vr(num + 2 * q, 2)}, {vr(den, 2)} op_sel_hi:[1,0]")
                p = ob + 4 * (2 * a + s)
                for q in range(4):
                    A(f"v_cvt_pk_bf16_f32 v{p + q}, v{num + 2 * q}, v{num + 2 * q + 1}")
                A(f"buffer_store_dwordx4 {vr(p, 4)}, v{V['st'] + 2 + a}, s[{dWS}:{dWS+3}], s{sc['sA2']} offen offset:{2048 * s} sc1")
        self.stamp("ost")
        A("s_waitcnt vmcnt(0)")
        self.set_flag(dWS, sc["sFL"], V["one"])
        self.stamp("oflag")
        self.stamp_out("att")
        A("s_endpgm")

    def build(self):
        self.entry()
        self.lwave()
        self.cwave()
        self.A("L_end:")
        body = self.A.finish()
        here = os.path.dirname(os.path.abspath(__file__))
        head = open(os.path.join(here, "header.txt")).read()
        return f"""{head}; @launch grid=(256,1,1) block=(512,1,1) lds={LDS_BYTES}
.amdgcn_target "amdgcn-amd-amdhsa--gfx950"
.text
.globl {NAME}
.p2align 8
.type {NAME},@function
{NAME}:
{body}
.section .rodata,"a"
.p2align 6
.amdhsa_kernel {NAME}
  .amdhsa_next_free_vgpr 256
  .amdhsa_next_free_sgpr 102
  .amdhsa_accum_offset 256
  .amdhsa_group_segment_fixed_size 0
  .amdhsa_kernarg_size 88
  .amdhsa_user_sgpr_count 2
  .amdhsa_user_sgpr_kernarg_segment_ptr 1
  .amdhsa_system_sgpr_workgroup_id_x 1
.end_amdhsa_kernel
"""


def generate(**kw):
    cfg = Cfg()
    for k, v in kw.items():
        assert hasattr(cfg, k), k
        setattr(cfg, k, v)
    return Gen(cfg).build()


if __name__ == "__main__":
    out = sys.argv[1]
    kw = {}
    for a in sys.argv[2:]:
        k, v = a.split("=")
        kw[k] = int(v) if v.lstrip("-").isdigit() else v
    open(out, "w").write(generate(**kw))
```

```python
import sys, os
sys.path.insert(0, os.path.dirname(os.path.abspath(__file__)))
from asmlib import Asm, Alloc, vr, sr, interleave

NAME = "parallel_sum__linear_attn_block__dense_activation_squared_relu__prompt_kernel"

NSTEP_H, NSTEP = 86, 118
RT_STRIDE = NSTEP * 2048
WS_A2 = 0
WS_KVP = 32 * RT_STRIDE
WS_ZP = WS_KVP + 16 * 16 * 1024
WS_FLAG = WS_ZP + 16 * 16 * 128
FL_O, FL_KV = 512 * 128, 1024 * 128
WS_END = WS_FLAG + 1280 * 128
CLR_WG = 192
WS_STAMP = 16 << 20

L_X, L_W, L_MISC = 0, 49152, 147456
L_R, L_MS, L_CS, L_FL, L_KVX = L_MISC, L_MISC + 512, L_MISC + 1024, L_MISC + 4096, L_MISC + 8192
LDS_BYTES = 163840

sWAVE, sI, sG, sTYPE, sRT, sCT, sW = 3, 26, 27, 28, 29, 30, 31
pX, pWQKV, pWO, pW1, pB1, pW2, pB2, pOUT, pDBG, pWS = 4, 6, 8, 12, 14, 16, 18, 20, 22, 24
sPOLL = 64
SPIN = 200000
STAMP_NAMES = {}


class Cfg:
    stamps = False
    rot1 = 1
    rot2 = 1
    ring = 5
    code_pf = True
    thr = 8
    w2touch = 0
    nostat = 0
    nocs = 0
    nodma = 0
    outfl = ''
    lst = 0
    polldiag = 0
    nost = 0
    nochain = 0
    nowait = 0
    map2 = 0
    skip = ()
    probe = None
    amp = None
    ampcyc = 0
    psleep = 0
    fstride = 128


def srd(A, d, base, size):
    A(f"s_mov_b32 s{d}, s{base}")
    A(f"s_mov_b32 s{d+1}, s{base+1}")
    A(f"s_mov_b32 s{d+2}, {size}")
    A(f"s_mov_b32 s{d+3}, 0x20000")


class Gen:
    def __init__(self, cfg):
        self.cfg = cfg
        self.A = Asm()
        self.nlabel = 0
        self.vSTAMP = 255
        self.inL = False
        self.stamped = []

    def label(self, p):
        self.nlabel += 1
        return f"L_{p}_{self.nlabel}"

    def stamp(self, name, real=False):
        if self.inL and name == self.cfg.amp:
            self.A(("s_memtime" if self.cfg.ampcyc else "s_memrealtime") + " s[98:99]")
            self.A("s_waitcnt lgkmcnt(0)")
        if not self.cfg.stamps:
            return
        pool = [96, 98, 72, 74, 76, 78, 4, 6, 8, 10, 12, 14, 16, 18, 20, 22, 0] if self.inL else [96, 98] + list(range(52, 80, 2)) + [4, 6, 8, 10, 12, 14, 16, 18]
        if name in self.cfg.skip:
            return
        k = len(self.stamped)
        self.stamped.append((name, pool[k]))
        self.A(("s_memrealtime" if real else "s_memtime") + f" s[{pool[k]}:{pool[k]+1}]")

    def stamp_out(self, role):
        if not self.cfg.stamps:
            return
        A = self.A
        STAMP_NAMES[role] = [n for n, _ in self.stamped]
        A("s_waitcnt lgkmcnt(0)")
        A(f"v_mov_b32 v{self.vSTAMP}, 0")
        for k, (n, r) in enumerate(self.stamped):
            A(f"v_writelane_b32 v{self.vSTAMP}, s{r}, {k}")
        srd(A, 80, pWS, WS_STAMP + (1 << 20))
        A("s_lshl_b32 s100, s2, 3")
        A(f"s_add_u32 s100, s100, s{sWAVE}")
        A("s_lshl_b32 s100, s100, 8")
        A(f"s_add_u32 s100, s100, {WS_STAMP}")
        A("v_lshlrev_b32 v254, 2, v0")
        A(f"buffer_store_dword v{self.vSTAMP}, v254, s[80:83], s100 offen")

    def wait_flags(self, dSRD, sOff, vOff, vT, tag, nl):
        A = self.A
        lp, ok = self.label("fl"), self.label("flok")
        A(f"s_mov_b32 s80, {SPIN}")
        A(f"s_mov_b64 exec, {(1 << nl) - 1}")
        A(f"{lp}:")
        A(f"buffer_load_dword v{vT}, v{vOff}, s[{dSRD}:{dSRD+3}], s{sOff} offen sc1")
        A("s_sub_u32 s80, s80, 1")
        A(f"s_cbranch_scc1 {ok}")
        A("s_waitcnt vmcnt(0)")
        A(f"v_cmp_ne_u32 vcc, v{tag}, v{vT}" if tag is not None else f"v_cmp_eq_u32 vcc, 0, v{vT}")
        A("s_cmp_eq_u64 vcc, 0")
        if self.cfg.psleep:
            A(f"s_cbranch_scc1 {ok}")
            A(f"s_sleep {self.cfg.psleep}")
            A(f"s_branch {lp}")
        else:
            A(f"s_cbranch_scc0 {lp}")
        A(f"{ok}:")
        A("s_mov_b64 exec, -1")

    def set_flag(self, sSRD, sOff):
        A, V = self.A, self.V
        A("s_mov_b32 exec_hi, 0")
        A(f"buffer_store_dword v{V['tag']}, v{V['l4']}, s[{sSRD}:{sSRD+3}], s{sOff} offen sc1")
        A("s_mov_b64 exec, -1")

    def lds_spin(self, vAddr, off, n, vT, reads):
        A = self.A
        lp, ok = self.label("ls"), self.label("lsok")
        A(f"s_mov_b32 s80, {SPIN}")
        A(f"{lp}:")
        A({1: "ds_read_b32", 4: "ds_read_b128"}[n] + f" {vr(vT, n)}, v{vAddr} offset:{off}")
        for x in reads:
            A(x)
        A("s_sub_u32 s80, s80, 1")
        A(f"s_cbranch_scc1 {ok}")
        A(f"s_waitcnt lgkmcnt({min(len(reads), 15)})")
        if n == 4:
            A(f"v_and_b32 v{vT}, v{vT}, v{vT+1}")
            A(f"v_and_b32 v{vT+2}, v{vT+2}, v{vT+3}")
            A(f"v_and_b32 v{vT}, v{vT}, v{vT+2}")
        A(f"v_readfirstlane_b32 s81, v{vT}")
        A("s_cmp_eq_u32 s81, 0")
        A("s_waitcnt lgkmcnt(0)")
        A(f"s_cbranch_scc1 {lp}")
        A(f"{ok}:")
        A("s_waitcnt lgkmcnt(0)")

    def entry(self):
        A = self.A
        A("s_cmp_ge_u32 s2, 256")
        A("s_cbranch_scc0 L_go")
        A("s_endpgm")
        A("L_go:")
        if self.cfg.amp:
            A(("s_memtime" if self.cfg.ampcyc else "s_memrealtime") + " s[96:97]")
        self.stamp("real0", real=True)
        self.stamp("entry")
        A("s_load_dwordx16 s[4:19], s[0:1], 0")
        A("s_load_dwordx4 s[20:23], s[0:1], 64")
        A("s_load_dwordx2 s[24:25], s[0:1], 80")
        A("v_lshrrev_b32 v1, 6, v0")
        A("v_and_b32 v0, 63, v0")
        A(f"v_readfirstlane_b32 s{sWAVE}, v1")
        A("s_and_b32 s80, s2, 1")
        A("s_bfe_u32 s81, s2, 0x20001")
        A("s_lshr_b32 s82, s2, 3")
        A(f"s_and_b32 s{sI}, s82, 7")
        A(f"s_lshl3_add_u32 s{sI}, s80, s{sI}")
        A(f"s_bfe_u32 s{sTYPE}, s82, 0x10003")
        A(f"s_lshr_b32 s{sG}, s82, 4")
        A(f"s_lshl1_add_u32 s{sG}, s81, s{sG}")
        if self.cfg.map2 == 0:
            A(f"s_and_b32 s{sRT}, s82, 3")
            A(f"s_lshl2_add_u32 s{sRT}, s81, s{sRT}")
            A(f"s_lshl4_add_u32 s{sRT}, s80, s{sRT}")
            A(f"s_lshr_b32 s{sCT}, s82, 2")
        else:
            A(f"s_bfe_u32 s84, s2, 0x10001")
            A(f"s_and_b32 s{sRT}, s82, 7")
            A(f"s_lshl3_add_u32 s{sRT}, s84, s{sRT}")
            A(f"s_lshl4_add_u32 s{sRT}, s80, s{sRT}")
            A(f"s_bfe_u32 s84, s2, 0x10002")
            A(f"s_lshr_b32 s{sCT}, s82, 3")
            A(f"s_lshl2_add_u32 s{sCT}, s84, s{sCT}")
        A(f"s_and_b32 s{sW}, s{sWAVE}, 3")
        A(f"s_mul_i32 s83, s{sG}, 11")
        A("s_add_u32 s83, s83, 1")
        A("s_lshr_b32 s83, s83, 1")
        A("s_min_u32 s83, s83, 38")
        A(f"s_cmp_ge_u32 s{sWAVE}, 4")
        A("s_cbranch_scc0 L_C")

    def lwave(self):
        A, cfg = self.A, self.cfg
        self.inL = True
        dX, dW, dW2, dWO, dAH, dAO, dOUT, dB2, dFL, dDBG = 32, 36, 40, 44, 48, 52, 56, 60, 64, 68
        sSTR, sXB, sLX, sLW, sKX, sKW, sKS, sT, sS2, sSA, sFH, sFO, sEND, sO0 = 84, 85, 86, 87, 88, 89, 90, 91, 92, 93, 94, 95, 83, 27
        al = Alloc(1, 254)
        acc = al(64, 4)
        NREG = 12
        breg = al(8 * NREG, 4)
        bwork = al(16, 4)
        R = cfg.ring
        aring = al(8 * (R + 1), 4)
        vtr = al(6)
        vW2a, vW2b, vA0, vA1, vO, vF, vP, vD, vTAG = [al() for _ in range(9)]
        vX = [aring + k for k in range(4)]
        vW = [aring + 4 + k for k in range(6)]
        t0, t1, t2, t3 = [aring + 10 + k for k in range(4)]
        vrow, vgsw = aring + 14, aring + 15

        A(f"v_lshrrev_b32 v{vrow}, 3, v0")
        A(f"v_and_b32 v{t0}, 7, v0")
        A(f"v_lshrrev_b32 v{t1}, 4, v0")
        A(f"v_xor_b32 v{t2}, v{t0}, v{t1}")
        A(f"v_lshlrev_b32 v{t2}, 4, v{t2}")
        A(f"v_lshl_add_u32 v{vX[0]}, v{vrow}, 10, v{t2}")
        A(f"v_xor_b32 v{vX[1]}, 0x2040, v{vX[0]}")
        A(f"v_add_u32 v{vX[2]}, 0x4000, v{vX[0]}")
        A(f"v_add_u32 v{vX[3]}, 0x4000, v{vX[1]}")
        A(f"v_and_b32 v{t1}, 1, v{t1}")
        A(f"v_lshlrev_b32 v{t1}, 2, v{t1}")
        A(f"v_xor_b32 v{t1}, v{t0}, v{t1}")
        A(f"v_lshlrev_b32 v{vgsw}, 4, v{t1}")
        A(f"s_cmp_eq_u32 s{sTYPE}, 0")
        A(f"s_movk_i32 s{sSTR}, 2752")
        A(f"s_cmovk_i32 s{sSTR}, 3072")
        A(f"s_lshl_b32 s80, s{sG}, 7")
        A("s_lshl_b32 s81, s83, 6")
        A(f"s_cmp_eq_u32 s{sTYPE}, 0")
        A("s_cselect_b32 s80, s80, s81")
        A("s_cselect_b32 s81, 0x400, 0")
        A("s_movk_i32 s82, 0x80")
        A("s_cmovk_i32 s82, 0x800")
        A(f"s_cselect_b32 s{sT}, 0, 0x100")
        A("s_add_u32 s81, s81, s80")
        A("s_add_u32 s82, s82, s80")
        A(f"s_add_u32 s80, s{sT}, s80")
        A(f"s_lshl_b32 s{sT}, s{sW}, 4")
        A(f"v_add_u32 v{t0}, s{sT}, v{vrow}")
        A(f"v_mul_u32_u24 v{t0}, s{sSTR}, v{t0}")
        A(f"v_add_u32 v{t0}, v{t0}, v{vgsw}")
        A(f"v_add_u32 v{vW[0]}, s81, v{t0}")
        A(f"v_add_u32 v{vW[1]}, s82, v{t0}")
        A(f"v_add_u32 v{vW[2]}, s80, v{t0}")
        A(f"s_bitcmp1_b32 0xea, s{sG}")
        A(f"s_cselect_b32 s80, s{sTYPE}, 0")
        A("s_lshl_b32 s80, s80, 6")
        A(f"v_and_b32 v{t1}, s80, v{vgsw}")
        A(f"v_lshl_add_u32 v{vW[2]}, v{t1}, 24, v{vW[2]}")
        A(f"s_lshl_b32 s{sT}, s{sSTR}, 3")
        for u in range(3):
            A(f"v_add_u32 v{vW[3+u]}, s{sT}, v{vW[u]}")
        A(f"s_lshl_b32 s{sXB}, s{sI}, 2")
        A(f"s_add_u32 s{sXB}, s{sXB}, s{sW}")
        A(f"s_lshl_b32 s{sXB}, s{sXB}, 15")
        A(f"s_lshl_b32 s{sLX}, s{sW}, 12")
        A(f"s_mul_i32 s{sLW}, s{sW}, 6144")
        A(f"s_add_u32 s{sLW}, s{sLW}, {L_W}")
        A(f"s_lshl_b32 s{sSTR}, s{sSTR}, 6")
        if cfg.rot1 > 1:
            A(f"s_lshl1_add_u32 s80, s{sG}, s{sTYPE}")
            A(f"s_add_u32 s80, s80, s{sI}")
            A(f"s_and_b32 s80, s80, {cfg.rot1 - 1}")
            A(f"s_mul_i32 s{sKS}, s80, {8 // cfg.rot1}")
        else:
            A(f"s_mov_b32 s{sKS}, 0")
        A("s_waitcnt lgkmcnt(0)")
        srd(A, dX, pX, 2097152)
        A(f"s_cmp_eq_u32 s{sTYPE}, 0")
        A(f"s_cselect_b64 s[{dW}:{dW+1}], s[{pWQKV}:{pWQKV+1}], s[{pW1}:{pW1+1}]")
        A(f"s_mov_b32 s{dW+2}, 1409024")
        A(f"s_cmov_b32 s{dW+2}, 1572864")
        A(f"s_mov_b32 s{dW+3}, 0x20000")
        self.stamp("go")
        if cfg.probe:
            pp = cfg.probe.split(":")
            ptr, off, kb = int(pp[0]), int(pp[1]) << 20, int(pp[2])
            fl = pp[3] if len(pp) > 3 else ""
            srd(A, 72, ptr, 0x10000000 if ptr == pWS else 2097152)
            A(f"s_lshl2_add_u32 s80, s2, s{sW}")
            A(f"s_mul_i32 s80, s80, {kb * 1024}")
            A(f"s_add_u32 s80, s80, {off}")
            A(f"v_lshlrev_b32 v{acc}, 4, v0")
            A("s_memtime s[96:97]")
            A("s_waitcnt lgkmcnt(0)")
            for q in range(kb):
                if fl == "st":
                    A(f"buffer_store_dwordx4 {vr(breg, 4)}, v{acc}, s[72:75], s80 offen sc1")
                else:
                    A(f"buffer_load_dwordx4 {vr(breg + 4 * (q % 16), 4)}, v{acc}, s[72:75], s80 offen {fl}")
                A("s_add_u32 s80, s80, 1024")
            A("s_waitcnt vmcnt(0)")
            self.stamp("probe")

        def stage(s):
            slot = s % 3
            A(f"s_lshl_b32 s{sKX}, s{sKS}, 7")
            A(f"s_add_u32 s{sKX}, s{sKX}, s{sXB}")
            A(f"s_mul_i32 s{sKW}, s{sKS}, s{sSTR}")
            A(f"s_add_u32 s{sKS}, s{sKS}, 1")
            A(f"s_and_b32 s{sKS}, s{sKS}, 7")
            if cfg.nodma:
                return
            for n in range(4):
                A(f"s_add_u32 m0, s{sLX}, {slot * 16384 + n * 1024}")
                A(f"buffer_load_dwordx4 v{vX[n]}, s[{dX}:{dX+3}], s{sKX} offen lds")
            for rg in range(2):
                for u in range(3):
                    A(f"s_add_u32 m0, s{sLW}, {slot * 24576 + u * 2048 + rg * 1024}")
                    A(f"buffer_load_dwordx4 v{vW[3*rg+u]}, s[{dW}:{dW+3}], s{sKW} offen lds")

        stage(0)
        stage(1)
        srd(A, dW2, pW2, 1409024)
        srd(A, dWO, pWO, 524288)
        A(f"s_mul_i32 s80, s{sRT}, {RT_STRIDE}")
        A(f"s_add_u32 s{dAH}, s{pWS}, s80")
        A(f"s_addc_u32 s{dAH+1}, s{pWS+1}, 0")
        A(f"s_mov_b32 s{dAH+2}, {NSTEP_H * 2048}")
        A(f"s_mov_b32 s{dAH+3}, 0x20000")
        A(f"s_add_u32 s{dAO}, s{dAH}, {NSTEP_H * 2048}")
        A(f"s_addc_u32 s{dAO+1}, s{dAH+1}, 0")
        A(f"s_mov_b32 s{dAO+2}, {32 * 2048}")
        A(f"s_mov_b32 s{dAO+3}, 0x20000")
        srd(A, dOUT, pOUT, 2097152)
        srd(A, dB2, pB2, 1024)
        srd(A, dFL, pWS, WS_END)
        srd(A, dDBG, pDBG, 256)
        A(f"v_and_b32 v{vF}, 3, v0")
        A(f"v_mov_b32 v{vD}, 0")
        A(f"v_lshlrev_b32 v{vF}, 7, v{vF}")
        A(f"s_lshl2_add_u32 s{sFH}, s{sRT}, s{sW}")
        A(f"s_lshl_b32 s{sFH}, s{sFH}, 9")
        A(f"s_add_u32 s{sFH}, s{sFH}, {WS_FLAG}")
        A(f"s_add_u32 s{sFO}, s{sFH}, {FL_O}")
        A(f"s_lshl_b32 s80, s{sCT}, 7")
        A(f"v_lshl_add_u32 v{vW2a}, v{vrow}, 10, v{vgsw}")
        A(f"v_add_u32 v{vW2a}, s80, v{vW2a}")
        A(f"v_add_u32 v{vW2b}, {8192 - 1024}, v{vW2a}")
        A(f"v_lshrrev_b32 v{t0}, 5, v0")
        A(f"v_bfe_u32 v{t1}, v0, 2, 2")
        A(f"v_lshlrev_b32 v{t2}, 9, v{t0}")
        A(f"v_lshl_add_u32 v{t2}, v{t1}, 7, v{t2}")
        A(f"v_lshrrev_b32 v{t1}, 1, v{t1}")
        A(f"s_and_b32 s80, s{sW}, 1")
        A(f"v_xor_b32 v{t1}, s80, v{t1}")
        A(f"v_lshl_add_u32 v{t2}, v{t1}, 6, v{t2}")
        A(f"v_bfe_u32 v{t1}, v0, 4, 1")
        A(f"v_lshl_add_u32 v{t2}, v{t1}, 5, v{t2}")
        A(f"v_and_b32 v{t1}, 3, v0")
        A(f"v_lshl_add_u32 v{t2}, v{t1}, 3, v{t2}")
        A(f"v_xor_b32 v{t3}, 64, v{t2}")
        A(f"v_add_u32 v{vtr+0}, s{sLX}, v{t2}")
        A(f"v_add_u32 v{vtr+1}, s{sLX}, v{t3}")
        A(f"v_add_u32 v{vtr+2}, s{sLW}, v{t2}")
        A(f"v_add_u32 v{vtr+3}, s{sLW}, v{t3}")
        A(f"v_add_u32 v{vtr+4}, 49152, v{vtr+2}")
        A(f"v_add_u32 v{vtr+5}, 49152, v{vtr+3}")
        A(f"s_lshr_b32 s81, s{sW}, 1")
        A("s_lshl_b32 s82, s81, 10")
        A(f"v_lshl_add_u32 v{vA0}, v0, 4, s82")
        A(f"v_xor_b32 v{vA1}, 0x400, v{vA0}")
        A(f"s_lshl1_add_u32 s81, s{sRT}, s81")
        A("s_lshl_b32 s81, s81, 15")
        A(f"s_lshl1_add_u32 s80, s{sCT}, s80")
        A(f"s_lshl_b32 s{sT}, s80, 6")
        A(f"s_add_u32 s81, s81, s{sT}")
        A(f"v_and_b32 v{t1}, 31, v0")
        A(f"v_lshl_add_u32 v{vO}, v{t1}, 10, s81")
        A(f"s_mul_i32 s81, s{sW}, 22")
        if cfg.rot2 > 1:
            A(f"s_and_b32 s82, s{sRT}, {cfg.rot2 - 1}")
            A("s_mul_i32 s80, s82, 22")
            A(f"s_lshr_b32 s80, s80, {cfg.rot2.bit_length() - 1}")
            A("s_add_u32 s80, s80, s81")
            A(f"s_add_u32 s{sEND}, s81, 22")
            A(f"s_mul_i32 s{sO0}, s82, {8 // cfg.rot2}")
        else:
            A("s_mov_b32 s80, s81")
            A(f"s_mov_b32 s{sO0}, 0")
        A(f"s_mov_b32 s{sS2}, s80")
        A(f"s_mov_b32 s{sSA}, s80")

        for s in range(6):
            A("s_waitcnt vmcnt(10)")
            A("s_barrier")
            if s in (0, 2, 4):
                self.stamp(f"b{s}")
            if s == 5:
                A("s_mov_b64 exec, 1")
                A(f"buffer_load_dword v{vP}, v{vD}, s[{dDBG}:{dDBG+3}], 0 offen sc1")
                A("s_mov_b64 exec, -1")
            stage(s + 2)
        A("s_waitcnt vmcnt(10)")
        A(f"v_readfirstlane_b32 s81, v{vP}")
        A("s_cmp_lg_u32 s81, 0")
        A("s_cbranch_scc1 L_tag_ok")
        A("s_mov_b32 s82, 0")
        self.wait_flags(dDBG, 82, vD, vP, None, 1)
        A("s_waitcnt vmcnt(0)")
        A(f"v_readfirstlane_b32 s81, v{vP}")
        A("s_nop 1")
        A("L_tag_ok:")
        A(f"v_mov_b32 v{vTAG}, s81")
        A(f"v_mov_b32 v{vD}, {L_FL}")
        A(f"ds_write_b32 v{vD}, v{vTAG} offset:256")
        A("s_waitcnt lgkmcnt(0)")
        A("s_barrier")
        self.stamp("b6")

        def slots_of(k):
            return [("X", k, 0), ("X", k, 1), ("W", k, 0), ("W", k, 1), ("W", k, 2)]
        free = [("W", 3, 0), ("W", 3, 1), ("W", 3, 2)] + slots_of(2)
        where = {}

        def lds_imm(sl):
            reg, k, idx = sl
            return k * 16384 + idx * 2048 if reg == "X" else k * 24576 + idx * 2048

        def kstep(n, sRun, sDst, shift):
            if n >= 22:
                return [f"s_add_u32 s{sDst}, s{sO0}, {n - 22}", f"s_and_b32 s{sDst}, s{sDst}, 7",
                        f"s_lshl3_add_u32 s{sDst}, s{sW}, s{sDst}", f"s_lshl_b32 s{sDst}, s{sDst}, {shift}"]
            out = [f"s_lshl_b32 s{sDst}, s{sRun}, {shift}", f"s_add_u32 s{sRun}, s{sRun}, 1"]
            if cfg.rot2 > 1 and n < 21:
                out += [f"s_cmp_ge_u32 s{sRun}, s{sEND}", "s_cselect_b32 s80, 22, 0", f"s_sub_u32 s{sRun}, s{sRun}, s80"]
            return out

        def issue_w2(n):
            sl = free.pop(0)
            where[n] = sl
            base = sLX if sl[0] == "X" else sLW
            d = dW2 if n < 22 else dWO
            A(f"s_add_u32 m0, s{base}, {lds_imm(sl)}")
            for x in kstep(n, sS2, 82, 14):
                A(x)
            A(f"buffer_load_dwordx4 v{vW2a}, s[{d}:{d+3}], s82 offen lds")
            A(f"buffer_load_dwordx4 v{vW2b}, s[{d}:{d+3}], s82 offen offset:1024 lds")

        def tr_reads(n, dst):
            reg, k, idx = where[n]
            if reg == "X":
                a, imm = vtr, lds_imm(where[n])
            elif k < 2:
                a, imm = vtr + 2, lds_imm(where[n])
            else:
                a, imm = vtr + 4, lds_imm(where[n]) - 49152
            return [f"ds_read_b64_tr_b16 {vr(dst + 4 * nt + 2 * j, 2)}, v{a + nt} offset:{imm + 1024 * j}"
                    for nt in range(2) for j in range(2)]

        no = 8 // cfg.rot2 if cfg.rot2 > 1 else 0
        nh = -(-22 // cfg.rot2)
        order = list(range(nh)) + list(range(22, 22 + no)) + list(range(nh, 22)) + list(range(22 + no, 30))
        for n in order[:4]:
            issue_w2(n)
        A("s_waitcnt vmcnt(8)")
        A("s_barrier")
        self.stamp("b7")
        free.extend(slots_of(0))
        pending = None
        for k in range(4, 30):
            if pending is not None:
                A("s_waitcnt lgkmcnt(0)")
                free.append(pending); pending = None
            if not free:
                self.lds_spin(vD, 0, 4, bwork, [])
                free.extend(slots_of(1))
            issue_w2(order[k])
            if k == 16:
                self.stamp("w2half")
            n = order[k - 4]
            if n < NREG or cfg.thr < 8:
                A(f"s_waitcnt vmcnt({cfg.thr})")
            if n < NREG:
                for x in tr_reads(n, breg + 8 * n):
                    A(x)
                pending = where[n]
        assert pending is None
        xr, br = acc + 16, acc + 24
        A(f"v_lshrrev_b32 v{t0}, 5, v0")
        A(f"v_lshl_add_u32 v{t1}, v{t0}, 3, v{vO}")
        A(f"v_lshl_add_u32 v{t2}, v{t0}, 3, s{sT}")
        A(f"v_lshl_add_u32 v{vO}, v{t0}, 4, v{vO}")
        for j in range(4):
            A(f"buffer_load_dwordx2 {vr(xr + 2 * j, 2)}, v{t1}, s[{dX}:{dX+3}], 0 offen offset:{16 * j}")
        for j in range(4):
            A(f"buffer_load_dwordx2 {vr(br + 2 * j, 2)}, v{t2}, s[{dB2}:{dB2+3}], 0 offen offset:{16 * j}")
        self.stamp("w2iss")
        if not cfg.nowait:
            self.wait_flags(dFL, sFH, vF, vP, vTAG, 4)
        self.stamp("hflag")

        def a_loads(n):
            b = aring + 8 * (n % (R + 1))
            d = dAH if n < 22 else dAO
            out = []
            out += kstep(n, sSA, 81, 11)
            out.append(f"buffer_load_dwordx4 {vr(b, 4)}, v{vA0}, s[{d}:{d+3}], s81 offen sc1")
            out.append(f"buffer_load_dwordx4 {vr(b + 4, 4)}, v{vA1}, s[{d}:{d+3}], s81 offen sc1")
            return out

        for n in range(R):
            for x in a_loads(n):
                A(x)
        A(f"s_waitcnt vmcnt({2 * R})")
        A("s_mov_b32 s82, 0xffff0000")
        for q in range(8):
            A(f"v_lshlrev_b32 v{acc + 2 * q}, 16, v{xr + q}")
            A(f"v_and_b32 v{acc + 2 * q + 1}, s82, v{xr + q}")
            A(f"v_lshlrev_b32 v{acc + 32 + 2 * q}, 16, v{br + q}")
            A(f"v_and_b32 v{acc + 33 + 2 * q}, s82, v{br + q}")
        for q in range(8):
            A(f"v_pk_add_f32 {vr(acc + 2 * q, 2)}, {vr(acc + 2 * q, 2)}, {vr(acc + 32 + 2 * q, 2)}")

        for n in range(30):
            nxt = n + R
            if nxt == 22:
                self.stamp("preO")
                if not (cfg.nowait or cfg.nochain):
                    self.wait_flags(dFL, sFO, vF, vP, vTAG, 4)
                self.stamp("oflag")
            loads = a_loads(nxt) if nxt < 30 else []
            for x in loads:
                A(x)
            left = min(R, 29 - n)
            bsrc = breg + 8 * n if n < NREG else bwork + 8 * (n % 2)
            A(f"s_waitcnt vmcnt({2 * left})" + (" lgkmcnt(0)" if n >= NREG else ""))
            b = aring + 8 * (n % (R + 1))
            mf = []
            for tt in range(2):
                for nt in range(2):
                    blk = acc + 16 * (nt + 2 * tt)
                    c = "0" if (n == 0 and blk != acc) else vr(blk, 16)
                    mf.append(f"v_mfma_f32_32x32x16_bf16 {vr(blk, 16)}, {vr(bsrc + 4 * nt, 4)}, {vr(b + 4 * tt, 4)}, {c}")
            if NREG <= n + 1 < 30:
                mf = interleave(mf, (tr_reads(n + 1, bwork + 8 * ((n + 1) % 2)), 0, 1))
            for x in mf:
                A(x)
        self.stamp("mfend")
        vr0 = t0
        A(f"v_lshl_add_u32 v{vr0}, v0, 4, s{sLX}")
        for blk in range(1, 4):
            for q in range(4):
                A(f"ds_write_b128 v{vr0}, {vr(acc + 16 * blk + 4 * q, 4)} offset:{(blk - 1) * 16384 + q * 1024}")
        for blk in range(1, 4):
            A(f"v_xor_b32 v{t0 + blk}, {blk << 12}, v{vr0}")
        A("s_waitcnt lgkmcnt(0)")
        A("s_barrier")
        for q in range(4):
            for blk in range(1, 4):
                A(f"ds_read_b128 {vr(breg + 16 * blk + 4 * q, 4)}, v{t0 + blk} offset:{(blk - 1) * 16384 + q * 1024}")
        pk = breg
        for q in range(4):
            A(f"s_waitcnt lgkmcnt({9 - 3 * q})")
            for blk in range(1, 4):
                for d in range(2):
                    a = acc + 4 * q + 2 * d
                    A(f"v_pk_add_f32 {vr(a, 2)}, {vr(a, 2)}, {vr(breg + 16 * blk + 4 * q + 2 * d, 2)}")
            for d in range(2):
                A(f"v_cvt_pk_bf16_f32 v{pk + 2 * q + d}, v{acc + 4 * q + 2 * d}, v{acc + 4 * q + 2 * d + 1}")
            if q % 2 == 1:
                p = pk + 2 * (q - 1)
                A(f"v_permlane32_swap_b32 v{p}, v{p + 2}")
                A(f"v_permlane32_swap_b32 v{p + 1}, v{p + 3}")
                A(f"buffer_store_dwordx4 {vr(p, 4)}, v{vO}, s[{dOUT}:{dOUT+3}], 0 offen offset:{16 * (q - 1)} {cfg.outfl.replace('_', ' ')}")
        if cfg.stamps or cfg.amp:
            A("s_waitcnt vmcnt(0)")
            self.stamp("end")
            self.stamp("real1", real=True)
            self.stamp_out("L")
        if cfg.amp:
            A("s_sub_u32 s98, s98, s96")
            A("s_lshr_b32 s98, s98, 1" if cfg.ampcyc else "s_mul_i32 s98, s98, 10")
            A("s_min_u32 s98, s98, 200000")
            A("s_memrealtime s[96:97]")
            A("L_amp:")
            A("s_memrealtime s[100:101]")
            A("s_waitcnt lgkmcnt(0)")
            A("s_sub_u32 s100, s100, s96")
            A("s_cmp_lt_u32 s100, s98")
            A("s_cbranch_scc1 L_amp")
        A("s_endpgm")
        self.inL = False
        self.stamped = self.stamped[:2]

    def cwave(self):
        A, cfg = self.A, self.cfg
        dWS, dB1, dDBG = 32, 36, 40
        self.dWS = dWS
        sR, sC, sMASK, sEPS, sL2E, sA2, sFL, sPERM, sHI = 84, 85, 86, 88, 90, 92, 93, 94, 44
        self.sc = dict(sR=sR, sC=sC, sMASK=sMASK, sEPS=sEPS, sL2E=sL2E, sA2=sA2, sFL=sFL, sPERM=sPERM, sHI=sHI)
        al = Alloc(1, 254)
        V = self.V = {}
        V["acc"] = al(96, 4)
        V["fr"] = al(40, 4)
        V["cs"] = al(12, 4)
        V["sel"] = al(4, 4)
        V["aug"] = al(20, 4)
        V["perm"] = al(4, 4)
        V["ones"] = al(4, 4)
        V["rT"] = al(32, 4)
        V["xa"] = al(8)
        V["wa"] = al(4)
        V["st"] = al(4)
        V["t"] = al(8, 4)
        V["r"] = al(4, 2)
        V["b1"] = al(3)
        V["tok"] = al(2)
        V["l16"] = al(1)
        V["one"] = al(1)
        V["fl"] = al(1)
        V["tag"] = al(1)
        V["l4"] = al(1)
        t = V["t"]
        A("L_C:")
        if cfg.code_pf:
            A("s_getpc_b64 s[80:81]")
            A("L_pc:")
            A(f"s_sub_u32 s80, s80, L_pc-{NAME}")
            A("s_subb_u32 s81, s81, 0")
            A("s_lshr_b32 s82, s2, 3")
            A(f"s_lshl2_add_u32 s82, s82, s{sW}")
            A(f"v_and_b32 v{t}, 3, v0")
            A(f"v_lshl_add_u32 v{t}, v{t}, 7, s82")
            A(f"v_lshlrev_b32 v{t}, 7, v{t}")
            A(f"v_min_u32 v{t}, L_end-{NAME}-4, v{t}")
            A("s_mov_b64 exec, 15")
            A(f"global_load_dword v{V['rT']}, v{t}, s[80:81]")
            A("s_mov_b64 exec, -1")
        A(f"s_lshr_b32 s{sR}, s{sW}, 1")
        A(f"s_and_b32 s{sC}, s{sW}, 1")
        A(f"s_mov_b32 s{sMASK}, 0xffff0000")
        A(f"s_mov_b32 s{sEPS}, 0x358637bd")
        A(f"s_mov_b32 s{sEPS+1}, 0x358637bd")
        A(f"s_mov_b32 s{sL2E}, 0x3fb8aa3b")
        A(f"s_mov_b32 s{sL2E+1}, 0x3fb8aa3b")
        A(f"s_mov_b32 s{sPERM}, 0x07060302")
        A(f"s_mov_b32 s{sHI}, 0xffff0000")
        A(f"s_mov_b32 s{sHI+1}, 0xffff0000")
        A(f"v_and_b32 v{t}, 31, v0")
        A(f"v_lshrrev_b32 v{t+1}, 5, v0")
        A(f"s_lshl_b32 s80, s{sW}, 5")
        A(f"v_add_u32 v{t+2}, s80, v{t}")
        A(f"v_lshlrev_b32 v{V['tok']}, 2, v{t+2}")
        A(f"v_add_u32 v{V['tok']}, {L_MISC}, v{V['tok']}")
        A(f"v_xor_b32 v{V['tok']+1}, 0x80, v{V['tok']}")
        A(f"v_bfe_u32 v{t+3}, v0, 1, 3")
        A(f"v_xor_b32 v{t+3}, v{t+3}, v{t+1}")
        A(f"s_lshl_b32 s80, s{sR}, 1")
        A(f"v_xor_b32 v{t+3}, s80, v{t+3}")
        A(f"v_lshlrev_b32 v{t+3}, 4, v{t+3}")
        A(f"v_lshl_add_u32 v{V['xa']}, v{t+2}, 7, v{t+3}")
        for p in range(1, 4):
            A(f"v_xor_b32 v{V['xa']+2*p}, {32 * p}, v{V['xa']}")
        for p in range(4):
            A(f"v_xor_b32 v{V['xa']+2*p+1}, 0x1000, v{V['xa']+2*p}")
        A(f"v_bfe_u32 v{t+2}, v0, 2, 2")
        A(f"v_lshlrev_b32 v{t+3}, 10, v{t+1}")
        A(f"v_lshl_add_u32 v{t+3}, v{t+2}, 7, v{t+3}")
        A(f"v_lshrrev_b32 v{t+2}, 1, v{t+2}")
        A(f"v_xor_b32 v{t+2}, s{sC}, v{t+2}")
        A(f"v_lshl_add_u32 v{t+3}, v{t+2}, 6, v{t+3}")
        A(f"v_bfe_u32 v{t+2}, v0, 4, 1")
        A(f"v_lshl_add_u32 v{t+3}, v{t+2}, 5, v{t+3}")
        A(f"v_and_b32 v{t+2}, 3, v0")
        A(f"v_lshl_add_u32 v{t+3}, v{t+2}, 3, v{t+3}")
        A(f"s_mul_i32 s80, s{sR}, 6144")
        A(f"s_sub_u32 s81, {L_W}, s80")
        A(f"s_add_u32 s80, s80, {L_W}")
        A(f"v_add_u32 v{V['wa']}, s80, v{t+3}")
        A(f"v_add_u32 v{V['wa']+1}, s81, v{t+3}")
        A(f"v_add_u32 v{V['wa']+2}, 49152, v{V['wa']}")
        A(f"v_add_u32 v{V['wa']+3}, 49152, v{V['wa']+1}")
        A(f"v_lshrrev_b32 v{t+2}, 4, v0")
        A(f"v_bfe_u32 v{t+3}, v0, 2, 2")
        A(f"v_mov_b32 v{V['ones']}, 0x3f803f80")
        A(f"v_cmp_eq_u32 vcc, v{t+2}, v{t+3}")
        for q in range(1, 4):
            A(f"v_mov_b32 v{V['ones']+q}, v{V['ones']}")
        for q in range(4):
            A(f"v_cndmask_b32 v{V['sel']+q}, 0, v{V['ones']}, vcc")
        for q in range(5):
            A(f"v_mov_b32 v{V['aug']+4*q+2}, 0")
            A(f"v_mov_b32 v{V['aug']+4*q+3}, 0")
        for q in range(4):
            A(f"v_mov_b32 v{V['st']+q}, 0")
        A(f"v_lshlrev_b32 v{V['l16']}, 4, v0")
        A(f"v_mov_b32 v{V['one']}, 1")
        A(f"v_mov_b32 v{V['fl']}, {L_FL}")
        A(f"v_lshlrev_b32 v{V['l4']}, 2, v0")
        A(f"v_add_u32 v{t+2}, {L_FL}, v{V['l4']}")
        A(f"ds_write_b32 v{t+2}, v{V['st']}")
        A("s_waitcnt lgkmcnt(0)")
        srd(A, dWS, pWS, WS_END)
        if cfg.w2touch:
            A(f"s_cmp_eq_u32 s{sW}, 3")
            A(f"s_cselect_b64 s[{dB1}:{dB1+1}], s[{pWO}:{pWO+1}], s[{pW2}:{pW2+1}]")
            A(f"s_mov_b32 s{dB1+2}, 1409024")
            A(f"s_cmov_b32 s{dB1+2}, 524288")
            A(f"s_mov_b32 s{dB1+3}, 0x20000")
            A(f"s_cselect_b32 s80, 0, s{sW}")
            A("s_lshl_b32 s80, s80, 8")
            A("s_add_u32 s80, s80, s2")
            A("s_lshl_b32 s80, s80, 11")
            A(f"v_lshlrev_b32 v{t+2}, 7, v0")
            A("s_mov_b64 exec, 0xffff")
            A(f"buffer_load_dword v{V['rT']+1}, v{t+2}, s[{dB1}:{dB1+3}], s80 offen")
            A("s_mov_b64 exec, -1")
        A(f"s_lshl1_add_u32 s80, s{sI}, s{sR}")
        A(f"s_mul_i32 s{sA2}, s80, {RT_STRIDE}")
        A(f"s_lshl1_add_u32 s81, s{sG}, s{sC}")
        A(f"s_lshl4_add_u32 s{sFL}, s80, s81")
        A(f"s_lshl_b32 s{sFL}, s{sFL}, 7")
        A(f"s_add_u32 s{sFL}, s{sFL}, {WS_FLAG}")
        A(f"s_lshl3_add_u32 s80, s2, s{sWAVE}")
        A(f"s_cmp_eq_u32 s80, {CLR_WG * 8}")
        A("s_cbranch_scc0 L_noclr")
        srd(A, dDBG, pDBG, 256)
        A("s_mov_b64 exec, 1")
        A(f"buffer_load_dword v{t+2}, off, s[{dWS}:{dWS+3}], s{sFL} sc1")
        A("s_mov_b32 s80, 0x9e3779b1")
        A("s_waitcnt vmcnt(0)")
        A(f"v_mul_lo_u32 v{t+2}, v{t+2}, s80")
        A(f"v_add_u32 v{t+2}, 0x7f4a7c15, v{t+2}")
        A(f"v_or_b32 v{t+2}, 1, v{t+2}")
        A(f"buffer_store_dword v{t+2}, off, s[{dDBG}:{dDBG+3}], 0 sc1")
        A("s_mov_b64 exec, -1")
        A("L_noclr:")
        A(f"s_cmp_eq_u32 s{sTYPE}, 0")
        A("s_cbranch_scc1 L_attn")
        srd(A, dB1, pB1, 2752)
        A(f"s_add_u32 s80, s83, s{sC}")
        A("s_lshl_b32 s81, s80, 12")
        A(f"s_add_u32 s{sA2}, s{sA2}, s81")
        A("s_lshl_b32 s80, s80, 6")
        A(f"v_lshlrev_b32 v{t+2}, 1, v{t}")
        A(f"v_lshl_add_u32 v{t+2}, v{t+1}, 20, v{t+2}")
        for u in range(3):
            A(f"buffer_load_ushort v{V['b1']+u}, v{t+2}, s[{dB1}:{dB1+3}], s80 offen offset:{128 * u}")
        self.kloop(False)
        self.mlp_tail()
        A("L_attn:")
        for u in range(3):
            A(f"v_mov_b32 v{V['b1']+u}, 0")
        A(f"v_bfe_u32 v{t+2}, v0, 2, 1")
        A(f"v_xor_b32 v{t+2}, v{t+2}, v{t+1}")
        A(f"v_bfe_u32 v{t+3}, v0, 4, 1")
        A(f"v_or_b32 v{t+2}, v{t+2}, v{t+3}")
        A(f"v_bfe_u32 v{t+3}, v0, 3, 1")
        A(f"v_lshl_add_u32 v{t+2}, v{t+2}, 1, v{t+3}")
        A(f"v_bfe_u32 v{t+3}, v0, 1, 1")
        A(f"v_lshl_add_u32 v{t+2}, v{t+2}, 1, v{t+3}")
        A(f"v_and_b32 v{t+3}, 1, v0")
        A(f"v_lshlrev_b32 v{t+3}, 4, v{t+3}")
        A(f"v_mov_b32 v{t+4}, 0x3f80")
        A(f"v_lshlrev_b32 v{t+3}, v{t+3}, v{t+4}")
        for q in range(4):
            A(f"v_cmp_eq_u32 vcc, {q}, v{t+2}")
            A(f"v_cndmask_b32 v{V['perm']+q}, 0, v{t+3}, vcc")
        self.kloop(True)
        self.attn_tail()

    def kloop(self, attn):
        A, V, sc = self.A, self.V, self.sc
        acc, fr, cs, st, t = V["acc"], V["fr"], V["cs"], V["st"], V["t"]

        def reads(n):
            s, p = divmod(n, 4)
            slot = s % 3
            f = fr + 20 * (n % 2)
            wa = V["wa"] + (p & 1) + (2 if slot == 2 else 0)
            wi = (0 if slot == 2 else slot * 24576) + p * 6144
            x = [f"ds_read_b128 {vr(f + 4 * a, 4)}, v{V['xa'] + 2 * p + a} offset:{slot * 16384}" for a in range(2)]
            w = [f"ds_read_b64_tr_b16 {vr(f + 8 + 4 * u + 2 * j, 2)}, v{wa} offset:{wi + u * 2048 + j * 512}"
                 for u in range(3) for j in range(2)]
            return [x[0]] + w[:2] + [x[1]] + w[2:]

        def mfma(dst, xf, wf, u, c):
            a, b = (xf, wf) if (attn and u < 2) else (wf, xf)
            return f"v_mfma_f32_32x32x16_bf16 {vr(dst, 16)}, {vr(a, 4)}, {vr(b, 4)}, {c}"
        self.mfma1 = mfma

        self.stamp("rdy")
        A("s_barrier")
        self.stamp("b0")
        for x in reads(0):
            A(x)
        for n in range(32):
            s, p = divmod(n, 4)
            f = fr + 20 * (n % 2)
            A("s_waitcnt lgkmcnt(0)")
            if p == 3 and s < 7:
                A("s_barrier")
            prim = []
            for u in range(3):
                for a in range(2):
                    d = acc + 16 * (2 * u + a)
                    prim.append(mfma(d, f + 4 * a, f + 8 + 4 * u, u, "0" if n == 0 else vr(d, 16)))
                if p % 2 == 0 and not (self.cfg.nocs and n > 0):
                    d = cs + 4 * u
                    prim[-1] = f"v_mfma_f32_16x16x32_bf16 {vr(d, 4)}, {vr(V['sel'], 4)}, {vr(f + 8 + 4 * u, 4)}, " + ("0" if n == 0 else vr(d, 4)) + "\n" + prim[-1]
            va = []
            for q in range(4):
                a, b = t + 2 * (q % 2), t + 2 * (q % 2) + 1
                va.append(f"v_lshlrev_b32 v{a}, 16, v{f + q}\nv_and_b32 v{b}, s{sc['sMASK']}, v{f + q}")
                va.append(f"v_add_f32 v{st}, v{st}, v{a}\nv_add_f32 v{st+1}, v{st+1}, v{b}")
                va.append(f"v_fmac_f32 v{st+2}, v{a}, v{a}\nv_fmac_f32 v{st+3}, v{b}, v{b}")
            if self.cfg.nostat:
                va = va[:1]
            if n < 31:
                seq = interleave(prim, (reads(n + 1), 0, 3), (va, 0, 5))
            else:
                seq = interleave(prim, (va, 0, 2), (self.stats_final(), 3, 5))
            for x in seq:
                A(x)
        self.stamp("T1")
        tok = V["tok"]
        ms, r0, r1 = V["aug"] + 1, V["r"], V["r"] + 2
        A(f"ds_write_b32 v{tok}, v{r0} offset:0")
        A(f"ds_write_b32 v{tok}, v{ms} offset:512")
        A(f"s_mul_i32 s80, s{sW}, 768")
        A(f"s_add_u32 s80, s80, {L_CS}")
        A(f"v_lshl_add_u32 v{t}, v0, 2, s80")
        A(f"s_xor_b32 s81, s{sW}, 2")
        A("s_mul_i32 s81, s81, 768")
        A(f"s_add_u32 s81, s81, {L_CS}")
        A(f"v_lshl_add_u32 v{t+1}, v0, 2, s81")
        for u in range(3):
            A(f"ds_write_b32 v{t}, v{cs + 4 * u} offset:{256 * u}")
        A(f"s_lshl_b32 s80, s{sW}, 2")
        A(f"v_add_u32 v{t+2}, s80, v{V['fl']}")
        A(f"ds_write_b32 v{t+2}, v{V['one']}")
        rd = [f"ds_read_b32 v{cs + 4 * u + 1}, v{t+1} offset:{256 * u}" for u in range(3)]
        rd.append(f"ds_read_b32 v{V['aug'] + 5}, v{tok+1} offset:512")
        rd.append(f"ds_read_b32 v{r1}, v{tok+1} offset:0")
        A(f"ds_read_b32 v{V['tag']}, v{V['fl']} offset:256")
        if attn:
            A(f"v_lshrrev_b32 v{t+2}, 5, v0")
            A(f"s_lshl_b32 s80, s{sW}, 7")
            A(f"s_add_u32 s80, s80, {L_R}")
            A(f"v_lshl_add_u32 v{t+2}, v{t+2}, 4, s80")
            A(f"v_xor_b32 v{t+3}, 0x80, v{t+2}")
            rd += [f"ds_read_b128 {vr(V['rT'] + 16 * a + 4 * j, 4)}, v{t + 2 + a} offset:{32 * j}" for a in range(2) for j in range(4)]
        A("s_waitcnt vmcnt(0)")
        self.lds_spin(V["fl"], 0, 4, t + 4, rd)
        self.stamp("xch")
        for a in range(2):
            A(f"v_perm_b32 v{V['aug'] + 4 * a}, v{V['aug'] + 4 * a + 1}, v{V['aug'] + 4 * a + 1}, s{sc['sPERM'] + 1}")
        for u in range(3):
            A(f"v_add_f32 v{cs + 4 * u}, v{cs + 4 * u}, v{cs + 4 * u + 1}")
        for u in range(3):
            A(f"v_and_b32 v{cs + 4 * u + 1}, s{sc['sMASK']}, v{cs + 4 * u}")
        for u in range(3):
            A(f"v_sub_f32 v{cs + 4 * u + 1}, v{cs + 4 * u}, v{cs + 4 * u + 1}")
        for u in range(3):
            A(f"v_perm_b32 v{V['aug'] + 8 + 4 * u}, v{cs + 4 * u + 1}, v{cs + 4 * u}, s{sc['sPERM']}")
            A(f"v_and_b32 v{cs + 4 * u + 2}, s{sc['sMASK']}, v{cs + 4 * u + 1}")
        for u in range(3):
            A(f"v_sub_f32 v{cs + 4 * u + 2}, v{cs + 4 * u + 1}, v{cs + 4 * u + 2}")
        for u in range(3):
            A(f"v_lshrrev_b32 v{cs + 4 * u + 2}, 16, v{cs + 4 * u + 2}")
        for u in range(3):
            A(f"v_lshl_or_b32 v{V['aug'] + 9 + 4 * u}, v{V['b1'] + u}, 16, v{cs + 4 * u + 2}")
        for u in range(3):
            for a in range(2):
                d = acc + 16 * (2 * u + a)
                A(mfma(d, V["aug"] + 4 * a, V["aug"] + 8 + 4 * u, u, vr(d, 16)))
        self.stamp("aug")

    def stats_final(self):
        V, sc = self.V, self.sc
        st, t = V["st"], V["t"]
        ms, r0 = V["aug"] + 1, V["r"]
        return [
            f"v_add_f32 v{st}, v{st}, v{st+1}\nv_add_f32 v{st+2}, v{st+2}, v{st+3}",
            f"v_mov_b32 v{st+1}, v{st}\nv_mov_b32 v{st+3}, v{st+2}",
            f"s_mov_b32 s{sc['sPERM']+1}, 0x01000100",
            f"v_permlane32_swap_b32 v{st}, v{st+1}\nv_permlane32_swap_b32 v{st+2}, v{st+3}",
            f"v_add_f32 v{st}, v{st}, v{st+1}\nv_add_f32 v{st+2}, v{st+2}, v{st+3}",
            f"v_mul_f32 v{st}, 0xbb000000, v{st}",
            f"v_mul_f32 v{st+2}, 0x3b000000, v{st+2}",
            f"v_fma_f32 v{st+2}, -v{st}, v{st}, v{st+2}",
            f"v_max_f32 v{st+2}, 0, v{st+2}",
            f"v_cvt_pk_bf16_f32 v{t}, v{st+2}, v{st+2}",
            f"v_and_b32 v{t}, s{sc['sMASK']}, v{t}",
            f"v_add_f32 v{t}, 0x3727c5ac, v{t}",
            f"v_cvt_pk_bf16_f32 v{t}, v{t}, v{t}",
            f"v_and_b32 v{t}, s{sc['sMASK']}, v{t}",
            f"v_sqrt_f32 v{t}, v{t}",
            f"v_cvt_pk_bf16_f32 v{ms}, v{st}, v{t}",
            f"v_and_b32 v{t}, s{sc['sMASK']}, v{ms}",
            f"v_rcp_f32 v{r0}, v{t}",
        ]

    def mlp_tail(self):
        A, V, sc = self.A, self.V, self.sc
        acc, t, dWS = V["acc"], V["t"], self.dWS
        A(f"s_lshl_b32 s80, s{sc['sC']}, 10")
        A(f"v_add_u32 v{t}, s80, v{V['l16']}")
        A(f"v_xor_b32 v{t+1}, 0x400, v{t}")
        for u in range(3):
            if u == 2:
                A(f"s_bitcmp1_b32 0xea, s{sG}")
                A(f"s_cselect_b32 s80, s{sc['sC']}, 0")
                A("s_cmp_eq_u32 s80, 1")
                A("s_cbranch_scc1 L_mlp_done")
            for a in range(2):
                d = acc + 16 * (2 * u + a)
                pk = V["fr"] + 8 * a
                for q in range(8):
                    A(f"v_pk_mul_f32 {vr(d + 2 * q, 2)}, {vr(d + 2 * q, 2)}, {vr(V['r'] + 2 * a, 2)} op_sel_hi:[1,0]")
                for q in range(16):
                    A(f"v_max_f32 v{d + q}, 0, v{d + q}")
                for q in range(8):
                    A(f"v_pk_mul_f32 {vr(d + 2 * q, 2)}, {vr(d + 2 * q, 2)}, {vr(d + 2 * q, 2)}")
                for s in range(2):
                    for q in range(4 * s, 4 * s + 4):
                        A(f"v_cvt_pk_bf16_f32 v{pk + q}, v{d + 2 * q}, v{d + 2 * q + 1}")
                    if not self.cfg.nost:
                        A(f"buffer_store_dwordx4 {vr(pk + 4 * s, 4)}, v{t + a}, s[{dWS}:{dWS+3}], s{sc['sA2']} offen offset:{2048 * s} sc1")
            A(f"s_add_u32 s{sc['sA2']}, s{sc['sA2']}, 0x2000")
        A("L_mlp_done:")
        self.stamp("stored")
        A("s_waitcnt vmcnt(0)")
        self.set_flag(dWS, sc["sFL"])
        self.stamp("flag")
        self.stamp_out("mlp")
        A("s_endpgm")
        self.stamped = self.stamped[:2]

    def phi(self, d, rsrc, pk, tmp):
        A, sc = self.A, self.sc
        e, l = sr(sc["sEPS"], 2), sr(sc["sL2E"], 2)
        for q in range(8):
            A(f"v_pk_fma_f32 {vr(d + 2 * q, 2)}, {vr(d + 2 * q, 2)}, {rsrc(q)[0]}, {e}{rsrc(q)[1]}")
        for q in range(8):
            A(f"v_pk_mul_f32 {vr(tmp + 2 * q, 2)}, {vr(d + 2 * q, 2)}, {l}")
        for q in range(16):
            A(f"v_exp_f32_e64 v{tmp + q}, v{tmp + q} clamp")
            A(f"v_max_f32_e64 v{d + q}, s{sc['sEPS']}, v{d + q}")
        for q in range(8):
            A(f"v_pk_add_f32 {vr(d + 2 * q, 2)}, {vr(d + 2 * q, 2)}, {vr(tmp + 2 * q, 2)}")
        for q in range(8):
            A(f"v_cvt_pk_bf16_f32 v{pk + q}, v{d + 2 * q}, v{d + 2 * q + 1}")

    def attn_tail(self):
        A, V, sc = self.A, self.V, self.sc
        acc, t, dWS, fr, rT = V["acc"], V["t"], self.dWS, V["fr"], V["rT"]
        sR, sC, sHI = sc["sR"], sc["sC"], sc["sHI"]
        hi = sr(sHI, 2)
        if self.cfg.nochain:
            self.stamp_out("att")
            A("s_endpgm")
            return
        tmp = V["cs"]
        pkf, vf = fr, fr + 16
        for a in range(2):
            self.phi(acc + 16 * a, lambda q: (vr(rT + 16 * a + 2 * q, 2), ""), pkf + 8 * a, tmp)
            d = acc + 32 + 16 * a
            for q in range(8):
                A(f"v_pk_mul_f32 {vr(d + 2 * q, 2)}, {vr(d + 2 * q, 2)}, {vr(rT + 16 * a + 2 * q, 2)}")
            for q in range(8):
                A(f"v_cvt_pk_bf16_f32 v{vf + 8 * a + q}, v{d + 2 * q}, v{d + 2 * q + 1}")
        D1, D2 = acc, acc + 16
        for k in range(4):
            A(f"v_mfma_f32_32x32x16_bf16 {vr(D1, 16)}, {vr(pkf + 4 * k, 4)}, {vr(vf + 4 * k, 4)}, " + ("0" if k == 0 else vr(D1, 16)))
            A(f"v_mfma_f32_32x32x16_bf16 {vr(D2, 16)}, {vr(pkf + 4 * k, 4)}, {vr(V['ones'], 4)}, " + ("0" if k == 0 else vr(D2, 16)))
        sPG, sKV, sZ, sFK = 46, 47, 48, 49
        A(f"s_lshl1_add_u32 s{sPG}, s{sG}, s{sC}")
        A(f"s_lshl4_add_u32 s80, s{sPG}, s{sI}")
        A(f"s_lshl_b32 s{sKV}, s80, 10")
        A(f"s_add_u32 s{sKV}, s{sKV}, {WS_KVP}")
        A(f"s_lshl_b32 s{sZ}, s80, 7")
        A(f"s_add_u32 s{sZ}, s{sZ}, {WS_ZP}")
        A(f"s_lshl_b32 s{sFK}, s{sPG}, 11")
        A(f"s_add_u32 s{sFK}, s{sFK}, {WS_FLAG + FL_KV}")
        A(f"s_lshl_b32 s80, s{sC}, 12")
        A(f"s_add_u32 s80, s80, {L_KVX}")
        vx, vfl = t, t + 1
        A(f"v_add_u32 v{vx}, s80, v{V['l16']}")
        A(f"s_lshl_b32 s80, s{sC}, 2")
        A(f"v_add_u32 v{vfl}, s80, v{V['fl']}")
        A(f"v_lshrrev_b32 v{t+2}, 4, v0")
        A(f"v_lshlrev_b32 v{t+2}, 5, v{t+2}")
        KV, Z = acc + 32, acc + 40
        for e in range(8):
            A(f"v_cndmask_b32 v{KV + e}, v{D1 + e}, v{D1 + 8 + e}, {hi}")
        for e in range(8):
            A(f"v_cndmask_b32 v{Z + e}, v{D2 + 8 + e}, v{D2 + e}, {hi}")
        A(f"s_cmp_eq_u32 s{sR}, 0")
        A("s_cbranch_scc1 L_kv_r0")
        for q in range(4):
            A(f"ds_write_b128 v{vx}, {vr(KV + 4 * q, 4)} offset:{1024 * q}")
        A(f"ds_write_b32 v{vfl}, v{V['one']} offset:16")
        A("s_branch L_kv_join")
        A("L_kv_r0:")
        o = acc + 48
        self.lds_spin(vfl, 16, 1, t + 4, [f"ds_read_b128 {vr(o + 4 * q, 4)}, v{vx} offset:{1024 * q}" for q in range(4)])
        for q in range(8):
            A(f"v_pk_add_f32 {vr(KV + 2 * q, 2)}, {vr(KV + 2 * q, 2)}, {vr(o + 2 * q, 2)}")
        for q in range(4):
            A(f"v_cvt_pk_bf16_f32 v{o + q}, v{KV + 2 * q}, v{KV + 2 * q + 1}")
        A(f"buffer_store_dwordx4 {vr(o, 4)}, v{V['l16']}, s[{dWS}:{dWS+3}], s{sKV} offen sc1")
        A(f"v_and_b32 v{t+3}, 1, v0")
        A(f"v_cmp_eq_u32 vcc, 1, v{t+3}")
        A(f"v_lshl_add_u32 v{t+3}, v{t+3}, 4, v{t+2}")
        for q in range(4):
            A(f"v_cndmask_b32 v{Z + q}, v{Z + q}, v{Z + 4 + q}, vcc")
        A("s_mov_b32 exec_lo, 0x00030003")
        A("s_mov_b32 exec_hi, 0x00030003")
        A(f"buffer_store_dwordx4 {vr(Z, 4)}, v{t+3}, s[{dWS}:{dWS+3}], s{sZ} offen sc1")
        A("s_mov_b64 exec, -1")
        A("L_kv_join:")
        self.stamp("kvst")
        pq = fr
        for a in range(2):
            self.phi(acc + 64 + 16 * a, lambda q: (vr(V["r"] + 2 * a, 2), " op_sel_hi:[1,0,1]"), pq + 8 * a, tmp)
        A(f"s_cmp_eq_u32 s{sR}, 0")
        A("s_cbranch_scc0 L_kv_noflag")
        A("s_waitcnt vmcnt(0)")
        A(f"s_lshl_b32 s80, s{sI}, 7")
        A(f"s_add_u32 s80, s80, s{sFK}")
        self.set_flag(dWS, 80)
        A("L_kv_noflag:")
        self.stamp("kvflag")
        A(f"s_lshl1_add_u32 s80, s{sPG}, s{sR}")
        A(f"s_lshl_b32 s{sKV}, s80, 13")
        A(f"s_add_u32 s{sKV}, s{sKV}, {WS_KVP}")
        A(f"s_add_u32 s50, s{sKV}, 0x1000")
        A(f"s_lshl_b32 s{sZ}, s{sPG}, 11")
        A(f"s_add_u32 s{sZ}, s{sZ}, {WS_ZP}")
        A(f"v_and_b32 v{t+3}, 15, v0")
        A(f"v_lshl_add_u32 v{t+2}, v{t+3}, 7, v{t+2}")
        A(f"s_lshl_b32 s80, s{sR}, 11")
        A(f"v_add_u32 v{vx}, s80, v{vx}")
        A(f"v_xor_b32 v{t+3}, 0x800, v{vx}")
        A(f"s_lshl_b32 s80, s{sW}, 2")
        A(f"v_add_u32 v{vfl}, s80, v{V['fl']}")
        A(f"v_xor_b32 v{V['st']}, 8, v{vfl}")
        A(f"s_lshl_b32 s80, s{sPG}, 12")
        A(f"s_add_u32 s{sc['sA2']}, s{sc['sA2']}, s80")
        A(f"s_add_u32 s{sc['sA2']}, s{sc['sA2']}, {NSTEP_H * 2048}")
        A(f"s_add_u32 s{sc['sFL']}, s{sc['sFL']}, {FL_O}")
        A(f"s_lshl_b32 s80, s{sC}, 10")
        A(f"v_add_u32 v{V['st']+2}, s80, v{V['l16']}")
        A(f"v_xor_b32 v{V['st']+3}, 0x400, v{V['st']+2}")
        A(f"v_and_b32 v{t+4}, 15, v0")
        A(f"v_lshlrev_b32 v{t+4}, 7, v{t+4}")
        if self.cfg.stamps and self.cfg.polldiag:
            A("s_waitcnt vmcnt(0)")
            self.stamp("fack")
            for q in range(3):
                A("s_mov_b64 exec, 0xffff")
                A(f"buffer_load_dword v{t+5}, v{t+4}, s[{dWS}:{dWS+3}], s{sFK} offen sc1")
                A("s_mov_b64 exec, -1")
                A("s_waitcnt vmcnt(0)")
                self.stamp(f"p{q}")
        self.wait_flags(dWS, sFK, t + 4, t + 5, V['tag'], 16)
        self.stamp("kvseen")
        part = acc + 48
        for q in range(2):
            A(f"buffer_load_dwordx4 {vr(Z + 4 * q, 4)}, v{t+2}, s[{dWS}:{dWS+3}], s{sZ} offen offset:{16 * q} sc1")
        for p in range(8):
            A(f"buffer_load_dwordx4 {vr(part + 4 * p, 4)}, v{V['l16']}, s[{dWS}:{dWS+3}], s{sKV if p < 4 else 50} offen offset:{1024 * (p % 4)} sc1")
        A("s_waitcnt vmcnt(8)")
        for sh in (8, 4, 2, 1):
            for e in range(8):
                A(f"v_add_f32_dpp v{Z + e}, v{Z + e}, v{Z + e} row_ror:{sh} row_mask:0xf bank_mask:0xf")
        for p in range(8):
            A(f"s_waitcnt vmcnt({7 - p})")
            A(f"v_mfma_f32_32x32x16_bf16 {vr(D1, 16)}, {vr(V['perm'], 4)}, {vr(part + 4 * p, 4)}, " + ("0" if p == 0 else vr(D1, 16)))
        self.stamp("kvld")
        Zb, KVb, op0, op1 = tmp, tmp + 4, tmp + 8, tmp + 12
        for q in range(4):
            A(f"v_cvt_pk_bf16_f32 v{Zb + q}, v{Z + 2 * q}, v{Z + 2 * q + 1}")
        for q in range(2):
            A(f"ds_write_b128 v{vx}, {vr(D1 + 4 * q, 4)} offset:{1024 * q}")
        A(f"ds_write_b32 v{vfl}, v{V['one']} offset:32")
        self.lds_spin(V["st"], 32, 1, t + 4, [f"ds_read_b128 {vr(KV + 4 * q, 4)}, v{t+3} offset:{1024 * q}" for q in range(2)])
        for q in range(4):
            A(f"v_pk_add_f32 {vr(KV + 2 * q, 2)}, {vr(KV + 2 * q, 2)}, {vr(D1 + 2 * q, 2)}")
        for q in range(4):
            A(f"v_cvt_pk_bf16_f32 v{KVb + q}, v{KV + 2 * q}, v{KV + 2 * q + 1}")
        for q in range(4):
            A(f"v_cndmask_b32 v{op0 + q}, v{KVb + q}, v{Zb + q}, {hi}")
        for q in range(4):
            A(f"v_cndmask_b32 v{op1 + q}, v{Zb + q}, v{KVb + q}, {hi}")
        for a in range(2):
            for s in range(2):
                d = acc + 16 * (2 * a + s)
                A(f"v_mfma_f32_32x32x16_bf16 {vr(d, 16)}, {vr(op0 + 4 * s, 4)}, {vr(pq + 8 * a + 4 * s, 4)}, 0")
        ob = fr + 16
        for a in range(2):
            for s in range(2):
                d = acc + 16 * (2 * a + s)
                num, den = (d, d + 8) if s == 0 else (d + 8, d)
                A(f"v_add_f32 v{den}, s{sc['sEPS']}, v{den}")
                A(f"v_rcp_f32 v{den}, v{den}")
                for q in range(4):
                    A(f"v_pk_mul_f32 {vr(num + 2 * q, 2)}, {vr(num + 2 * q, 2)}, {vr(den, 2)} op_sel_hi:[1,0]")
                p = ob + 4 * (2 * a + s)
                for q in range(4):
                    A(f"v_cvt_pk_bf16_f32 v{p + q}, v{num + 2 * q}, v{num + 2 * q + 1}")
                A(f"buffer_store_dwordx4 {vr(p, 4)}, v{V['st'] + 2 + a}, s[{dWS}:{dWS+3}], s{sc['sA2']} offen offset:{2048 * s} sc1")
        self.stamp("ost")
        A("s_waitcnt vmcnt(0)")
        self.set_flag(dWS, sc["sFL"])
        self.stamp("oflag")
        self.stamp_out("att")
        A("s_endpgm")

    def build(self):
        self.entry()
        self.lwave()
        self.cwave()
        self.A("L_end:")
        body = self.A.finish()
        here = os.path.dirname(os.path.abspath(__file__))
        head = open(os.path.join(here, "header.txt")).read()
        launch = f"; @launch grid=(256,1,1) block=(512,1,1) lds={LDS_BYTES}"
        extra = ""
        if self.cfg.lst:
            a = f"; @launch kernel={NAME} grid=(256,1,1) block=(512,1,1) lds={LDS_BYTES}"
            b = "; @launch kernel=e_kernel grid=(1,1,1) block=(64,1,1) lds=0"
            launch = a + "\n" + b if self.cfg.lst == 1 else (b + "\n" + a if self.cfg.lst == 2 else a)
            body += "\n.p2align 8\n.globl e_kernel\n.type e_kernel,@function\ne_kernel:\n    s_endpgm\n"
            extra = """.p2align 6
.amdhsa_kernel e_kernel
  .amdhsa_next_free_vgpr 8
  .amdhsa_next_free_sgpr 16
  .amdhsa_accum_offset 8
  .amdhsa_group_segment_fixed_size 0
  .amdhsa_kernarg_size 88
  .amdhsa_user_sgpr_count 2
  .amdhsa_user_sgpr_kernarg_segment_ptr 1
  .amdhsa_system_sgpr_workgroup_id_x 1
.end_amdhsa_kernel
"""
        return f"""{head}{launch}
.amdgcn_target "amdgcn-amd-amdhsa--gfx950"
.text
.globl {NAME}
.p2align 8
.type {NAME},@function
{NAME}:
{body}
.section .rodata,"a"
.p2align 6
.amdhsa_kernel {NAME}
  .amdhsa_next_free_vgpr 256
  .amdhsa_next_free_sgpr 102
  .amdhsa_accum_offset 256
  .amdhsa_group_segment_fixed_size 0
  .amdhsa_kernarg_size 88
  .amdhsa_user_sgpr_count 2
  .amdhsa_user_sgpr_kernarg_segment_ptr 1
  .amdhsa_system_sgpr_workgroup_id_x 1
.end_amdhsa_kernel
{extra}"""


def generate(**kw):
    cfg = Cfg()
    for k, v in kw.items():
        assert hasattr(cfg, k), k
        setattr(cfg, k, v)
    return Gen(cfg).build()


if __name__ == "__main__":
    out = sys.argv[1]
    kw = {}
    for a in sys.argv[2:]:
        k, v = a.split("=")
        kw[k] = int(v) if v.lstrip("-").isdigit() else v
    open(out, "w").write(generate(**kw))
```

```python
import sys, os
sys.path.insert(0, os.path.dirname(os.path.abspath(__file__)))
from asmlib import Asm, Alloc, vr, sr, interleave

NAME = "parallel_sum__linear_attn_block__dense_activation_squared_relu__prompt_kernel"

NSTEP_H, NSTEP = 86, 118
RT_STRIDE = 262144
WS_A2 = 0
WS_KVP = 32 * RT_STRIDE
WS_ZP = WS_KVP + 16 * 16 * 1024
WS_FLAG = WS_ZP + 16 * 16 * 128
FL_KV = 1024 * 128
WS_END = WS_FLAG + 1280 * 128
TAG_WG = 192
WS_STAMP = 16 << 20

L_X, L_W, L_REST, L_MISC = 0, 65536, 139264, 147456
L_R, L_MS, L_CS, L_FL, L_PS, L_KVX = L_MISC, L_MISC + 512, L_MISC + 1024, L_MISC + 4096, L_MISC + 5120, L_MISC + 8192
LDS_BYTES = 163840

sWAVE, sI, sG, sTYPE, sRT, sCT, sW = 3, 26, 27, 28, 29, 30, 31
pX, pWQKV, pWO, pW1, pB1, pW2, pB2, pOUT, pDBG, pWS = 4, 6, 8, 12, 14, 16, 18, 20, 22, 24
sPOLL = 64
SPIN = 200000
STAMP_NAMES = {}


class Cfg:
    rot1 = 1
    rot2 = 8
    ring = 3
    thr = 4
    map2 = 1
    touch1 = 1
    touch2 = 4
    psleep = 0
    code_pf = 2
    tlb = 0
    tskip = 2
    otouch = 0
    hpre = 3
    opre = 3
    pause = 0
    thr2 = 4
    pre7 = 4
    x7 = 3
    outfl = ''
    stamps = False
    skip = ()
    amp = None
    ampcyc = 0
    nostat = 0
    nocs = 0
    nodma = 0
    nost = 0
    nochain = 0
    nowait = 0
    lst = 0
    kdiag = 0
    cslow = 0
    clkdiag = 0


class VM:
    def __init__(self, A):
        self.A = A; self.ops = []

    def issue(self, text, tag=None):
        self.A(text); self.ops.append(tag)

    def count(self, tag):
        k = max(i for i, t in enumerate(self.ops) if t == tag)
        n = len(self.ops) - 1 - k
        self.ops = self.ops[k + 1:]
        return n

    def has(self, tag):
        return tag in self.ops

    def wait(self, tag, extra=""):
        if tag in self.ops:
            self.A(f"s_waitcnt vmcnt({self.count(tag)}){extra}")
        elif extra:
            self.A(f"s_waitcnt{extra}")

    def limit(self, n):
        if len(self.ops) > n:
            self.A(f"s_waitcnt vmcnt({n})")
            self.ops = self.ops[len(self.ops) - n:]


def srd(A, d, base, size):
    A(f"s_mov_b32 s{d}, s{base}")
    A(f"s_mov_b32 s{d+1}, s{base+1}")
    A(f"s_mov_b32 s{d+2}, {size}")
    A(f"s_mov_b32 s{d+3}, 0x20000")


class Gen:
    def __init__(self, cfg):
        self.cfg = cfg
        self.A = Asm()
        self.nlabel = 0
        self.vSTAMP = 255
        self.inL = False
        self.stamped = []
        self.cold = []

    def label(self, p):
        self.nlabel += 1
        return f"L_{p}_{self.nlabel}"

    def stamp(self, name, real=False):
        if self.inL and name == self.cfg.amp:
            self.A(("s_memtime" if self.cfg.ampcyc else "s_memrealtime") + " s[98:99]")
            self.A("s_waitcnt lgkmcnt(0)")
        if not self.cfg.stamps:
            return
        pool = [96, 98, 72, 74, 76, 78, 4, 6, 8, 10, 12, 14, 16, 18, 20, 22, 0, 62] if self.inL else [96, 98] + list(range(52, 64, 2)) + list(range(4, 24, 2))
        if name in self.cfg.skip:
            return
        if self.cfg.clkdiag and self.inL and name in ("go", "b2", "b6", "w2half", "w2iss", "preO", "oflag", "rbar"):
            return
        k = len(self.stamped)
        self.stamped.append((name, pool[k]))
        self.A(("s_memrealtime" if real else "s_memtime") + f" s[{pool[k]}:{pool[k]+1}]")
        if self.cfg.clkdiag and self.inL and name in ("b0", "b4", "b7", "hflag", "mfend"):
            self.stamp("real_" + name, real=True)

    def stamp_out(self, role):
        if not self.cfg.stamps:
            return
        A = self.A
        STAMP_NAMES[role] = [n for n, _ in self.stamped]
        A("s_waitcnt lgkmcnt(0)")
        A(f"v_mov_b32 v{self.vSTAMP}, 0")
        for k, (n, r) in enumerate(self.stamped):
            A(f"v_writelane_b32 v{self.vSTAMP}, s{r}, {k}")
        srd(A, 80, pWS, WS_STAMP + (1 << 20))
        A("s_lshl_b32 s100, s2, 3")
        A(f"s_add_u32 s100, s100, s{sWAVE}")
        A("s_lshl_b32 s100, s100, 8")
        A(f"s_add_u32 s100, s100, {WS_STAMP}")
        A("v_lshlrev_b32 v254, 2, v0")
        A(f"buffer_store_dword v{self.vSTAMP}, v254, s[80:83], s100 offen")

    def poll_issue(self, sOff, n):
        return f"s_load_dwordx{n} s[{sPOLL}:{sPOLL+n-1}], s[{pWS}:{pWS+1}], s{sOff} glc"

    def poll_test(self, n, sTAG):
        out = [f"s_xor_b64 s[{sPOLL+q}:{sPOLL+q+1}], s[{sPOLL+q}:{sPOLL+q+1}], s[{sTAG}:{sTAG+1}]" for q in range(0, n, 2)]
        d = n // 2
        while d >= 2:
            out += [f"s_or_b64 s[{sPOLL+q}:{sPOLL+q+1}], s[{sPOLL+q}:{sPOLL+q+1}], s[{sPOLL+q+d}:{sPOLL+q+d+1}]" for q in range(0, d, 2)]
            d //= 2
        return out

    def wait_flags(self, sOff, n, sTAG, issued=False):
        A = self.A
        lp, ok = self.label("fl"), self.label("flok")
        loop = [f"s_mov_b32 s80, {SPIN}", f"{lp}:", self.poll_issue(sOff, n), "s_sub_u32 s80, s80, 1", "s_waitcnt lgkmcnt(0)",
                f"s_cbranch_scc1 {ok}"] + self.poll_test(n, sTAG) + [f"s_cbranch_scc1 {lp}"]
        if issued:
            slow = self.label("flslow")
            A("s_waitcnt lgkmcnt(0)")
            for x in self.poll_test(n, sTAG):
                A(x)
            A(f"s_cbranch_scc1 {slow}")
            self.cold += [f"{slow}:"] + loop + [f"s_branch {ok}"]
        else:
            for x in loop:
                A(x)
        A(f"{ok}:")

    def set_flag(self, sSRD, sOff, vOff, nl):
        A, V = self.A, self.V
        A(f"s_mov_b64 exec, {(1 << nl) - 1}")
        A(f"buffer_store_dword v{V['tag']}, v{vOff}, s[{sSRD}:{sSRD+3}], s{sOff} offen sc1")
        A("s_mov_b64 exec, -1")

    def lds_flag_read(self, vAddr, off, n, vT):
        return {1: "ds_read_b32", 4: "ds_read_b128"}[n] + f" {vr(vT, n)}, v{vAddr} offset:{off}"

    def lds_flag_test(self, n, vT):
        out = []
        if n == 4:
            out += [f"v_and_b32 v{vT}, v{vT}, v{vT+1}", f"v_and_b32 v{vT+2}, v{vT+2}, v{vT+3}", f"v_and_b32 v{vT}, v{vT}, v{vT+2}"]
        return out + [f"v_readfirstlane_b32 s81, v{vT}", "s_cmp_eq_u32 s81, 0"]

    def lds_spin(self, vAddr, off, n, vT, reads, sleep=0, A=None):
        A = A or self.A
        lp, ok = self.label("ls"), self.label("lsok")
        A(f"s_mov_b32 s80, {SPIN * 4}")
        A(f"{lp}:")
        if sleep:
            A(f"s_sleep {sleep}")
        A(self.lds_flag_read(vAddr, off, n, vT))
        for x in reads:
            A(x)
        A("s_sub_u32 s80, s80, 1")
        A(f"s_cbranch_scc1 {ok}")
        A(f"s_waitcnt lgkmcnt({min(len(reads), 15)})")
        for x in self.lds_flag_test(n, vT):
            A(x)
        A("s_waitcnt lgkmcnt(0)")
        A(f"s_cbranch_scc1 {lp}")
        A(f"{ok}:")
        A("s_waitcnt lgkmcnt(0)")

    def flush_cold(self):
        for x in self.cold:
            self.A(x)
        self.cold = []

    def entry(self):
        A = self.A
        A("s_cmp_ge_u32 s2, 256")
        A("s_cbranch_scc0 L_go")
        A("s_endpgm")
        A("L_go:")
        if self.cfg.amp:
            A(("s_memtime" if self.cfg.ampcyc else "s_memrealtime") + " s[96:97]")
        self.stamp("real0", real=True)
        self.stamp("entry")
        A("s_load_dwordx16 s[4:19], s[0:1], 0")
        A("s_load_dwordx4 s[20:23], s[0:1], 64")
        A("s_load_dwordx2 s[24:25], s[0:1], 80")
        if self.cfg.code_pf == 2:
            A("s_getpc_b64 s[80:81]")
            A("L_pc:")
            A("s_lshr_b32 s82, s2, 3")
            A("v_lshlrev_b32 v2, 7, v0")
            A("v_lshl_add_u32 v2, s82, 7, v2")
            A(f"v_min_u32 v2, L_end-L_pc-4, v2")
            A("s_mov_b32 exec_lo, 1")
            A("s_mov_b32 exec_hi, 1")
            A("global_load_dword v253, v2, s[80:81]")
            A("s_mov_b64 exec, -1")
        A("v_lshrrev_b32 v1, 6, v0")
        A("v_and_b32 v0, 63, v0")
        A(f"v_readfirstlane_b32 s{sWAVE}, v1")
        A("s_and_b32 s80, s2, 1")
        A("s_bfe_u32 s81, s2, 0x20001")
        A("s_lshr_b32 s82, s2, 3")
        A(f"s_and_b32 s{sI}, s82, 7")
        A(f"s_lshl3_add_u32 s{sI}, s80, s{sI}")
        A(f"s_bfe_u32 s{sTYPE}, s82, 0x10003")
        A(f"s_lshr_b32 s{sG}, s82, 4")
        A(f"s_lshl1_add_u32 s{sG}, s81, s{sG}")
        if self.cfg.map2 == 0:
            A(f"s_and_b32 s{sRT}, s82, 3")
            A(f"s_lshl2_add_u32 s{sRT}, s81, s{sRT}")
            A(f"s_lshl4_add_u32 s{sRT}, s80, s{sRT}")
            A(f"s_lshr_b32 s{sCT}, s82, 2")
        else:
            A(f"s_bfe_u32 s84, s2, 0x10001")
            A(f"s_and_b32 s{sRT}, s82, 7")
            A(f"s_lshl3_add_u32 s{sRT}, s84, s{sRT}")
            A(f"s_lshl4_add_u32 s{sRT}, s80, s{sRT}")
            A(f"s_bfe_u32 s84, s2, 0x10002")
            A(f"s_lshr_b32 s{sCT}, s82, 3")
            A(f"s_lshl2_add_u32 s{sCT}, s84, s{sCT}")
        A(f"s_and_b32 s{sW}, s{sWAVE}, 3")
        A(f"s_mul_i32 s83, s{sG}, 11")
        A("s_add_u32 s83, s83, 1")
        A("s_lshr_b32 s83, s83, 1")
        A("s_min_u32 s83, s83, 38")
        if self.cfg.tlb:
            A(f"s_cmp_lg_u32 s{sWAVE}, 0")
            A("s_cbranch_scc1 L_notlb")
            A("s_waitcnt lgkmcnt(0)")
            for k, ptr in enumerate((pX, pWQKV, pW1, pW2, pWO, pB1, pB2, pOUT)):
                A(f"s_load_dword s{64 + k}, s[{ptr}:{ptr+1}], 0")
            for k in range(5):
                A(f"s_mov_b32 s79, {k * (2 << 20) + (RT_STRIDE - 128 if k < 4 else (1 << 20))}")
                A(f"s_load_dword s{72 + k}, s[{pWS}:{pWS+1}], s79")
            A("L_notlb:")
        A(f"s_cmp_ge_u32 s{sWAVE}, 4")
        A("s_cbranch_scc0 L_C")

    def lwave(self):
        A, cfg = self.A, self.cfg
        self.inL = True
        vm = VM(A)
        if cfg.code_pf == 2:
            vm.ops.append("code")
        dX, dW, dW2, dWO, dAH, dAO, dOUT, dB2, dDBG = 32, 36, 40, 44, 48, 52, 56, 60, 68
        sSTR, sXB, sLX, sLW, sKX, sKW, sKS, sT, sS2, sSA, sFH, sFO, sEND, sO0 = 84, 85, 86, 87, 88, 89, 90, 91, 92, 93, 94, 95, 83, 27
        sTAG = 60
        sMASK = 26
        al = Alloc(1, 253)
        acc = al(64, 4)
        NREG = 12
        breg = al(8 * NREG, 4)
        bwork = al(16, 4)
        R = cfg.ring
        aring = al(8 * max(R + 1, 3), 4)
        vtr = al(8)
        vW2a, vW2b, vA0, vA1, vO, vP, vD = [al() for _ in range(7)]
        vX = [aring + k for k in range(4)]
        vW = [aring + 4 + k for k in range(6)]
        t0, t1, t2, t3 = [aring + 10 + k for k in range(4)]
        vrow, vgsw = aring + 14, aring + 15

        A(f"v_lshrrev_b32 v{vrow}, 3, v0")
        A(f"v_and_b32 v{t0}, 7, v0")
        A(f"v_lshrrev_b32 v{t1}, 4, v0")
        A(f"v_xor_b32 v{t2}, v{t0}, v{t1}")
        A(f"v_lshlrev_b32 v{t2}, 4, v{t2}")
        A(f"v_lshl_add_u32 v{vX[0]}, v{vrow}, 10, v{t2}")
        A(f"v_xor_b32 v{vX[1]}, 0x2040, v{vX[0]}")
        A(f"v_add_u32 v{vX[2]}, 0x4000, v{vX[0]}")
        A(f"v_add_u32 v{vX[3]}, 0x4000, v{vX[1]}")
        A(f"v_and_b32 v{t1}, 1, v{t1}")
        A(f"v_lshlrev_b32 v{t1}, 2, v{t1}")
        A(f"v_xor_b32 v{t1}, v{t0}, v{t1}")
        A(f"v_lshlrev_b32 v{vgsw}, 4, v{t1}")
        A(f"s_lshl_b32 s80, s{sG}, 7")
        A("s_lshl_b32 s81, s83, 6")
        A(f"s_movk_i32 s{sSTR}, 2752")
        A("s_movk_i32 s82, 0x80")
        A(f"s_cmp_eq_u32 s{sTYPE}, 0")
        A(f"s_cmovk_i32 s{sSTR}, 3072")
        A("s_cselect_b32 s80, s80, s81")
        A("s_cselect_b32 s81, 0x400, 0")
        A("s_cmovk_i32 s82, 0x800")
        A(f"s_cselect_b32 s{sT}, 0, 0x100")
        A("s_add_u32 s81, s81, s80")
        A("s_add_u32 s82, s82, s80")
        A(f"s_add_u32 s80, s{sT}, s80")
        A(f"s_lshl_b32 s{sT}, s{sW}, 4")
        A(f"v_add_u32 v{t0}, s{sT}, v{vrow}")
        A(f"v_mul_u32_u24 v{t0}, s{sSTR}, v{t0}")
        A(f"v_add_u32 v{t0}, v{t0}, v{vgsw}")
        A(f"v_add_u32 v{vW[0]}, s81, v{t0}")
        A(f"v_add_u32 v{vW[1]}, s82, v{t0}")
        A(f"v_add_u32 v{vW[2]}, s80, v{t0}")
        A(f"s_bitcmp1_b32 0xea, s{sG}")
        A(f"s_cselect_b32 s80, s{sTYPE}, 0")
        A("s_lshl_b32 s80, s80, 6")
        A(f"v_and_b32 v{t1}, s80, v{vgsw}")
        A(f"v_lshl_add_u32 v{vW[2]}, v{t1}, 24, v{vW[2]}")
        A(f"s_lshl_b32 s{sT}, s{sSTR}, 3")
        for u in range(3):
            A(f"v_add_u32 v{vW[3+u]}, s{sT}, v{vW[u]}")
        A(f"s_lshl2_add_u32 s{sXB}, s{sI}, s{sW}")
        A(f"s_lshl_b32 s{sXB}, s{sXB}, 15")
        A(f"s_lshl_b32 s{sLX}, s{sW}, 12")
        A(f"s_mul_i32 s{sLW}, s{sW}, 6144")
        A(f"s_add_u32 s{sLW}, s{sLW}, {L_W}")
        A(f"s_lshl_b32 s{sSTR}, s{sSTR}, 6")
        if cfg.rot1 > 1:
            A(f"s_lshl1_add_u32 s80, s{sG}, s{sTYPE}")
            A(f"s_add_u32 s80, s80, s{sI}")
            A(f"s_and_b32 s80, s80, {cfg.rot1 - 1}")
            A(f"s_mul_i32 s{sKS}, s80, {8 // cfg.rot1}")
        else:
            A(f"s_mov_b32 s{sKS}, 0")
        A(f"s_mov_b32 s{dX+2}, 2097152")
        A(f"s_mov_b32 s{dX+3}, 0x20000")
        A(f"s_mov_b32 s{dW+2}, 1409024")
        A(f"s_mov_b32 s{dW+3}, 0x20000")
        A(f"s_cmp_eq_u32 s{sTYPE}, 0")
        A(f"s_cmov_b32 s{dW+2}, 1572864")
        A("s_waitcnt lgkmcnt(0)")
        A(f"s_mov_b64 s[{dX}:{dX+1}], s[{pX}:{pX+1}]")
        A(f"s_cselect_b64 s[{dW}:{dW+1}], s[{pWQKV}:{pWQKV+1}], s[{pW1}:{pW1+1}]")
        self.stamp("go")

        def stage(s):
            slot = s % 3
            A(f"s_lshl_b32 s{sKX}, s{sKS}, 7")
            A(f"s_add_u32 s{sKX}, s{sKX}, s{sXB}")
            A(f"s_mul_i32 s{sKW}, s{sKS}, s{sSTR}")
            A(f"s_add_u32 s{sKS}, s{sKS}, 1")
            A(f"s_and_b32 s{sKS}, s{sKS}, 7")
            if cfg.nodma:
                return
            for n in range(4 if s < 7 else 0):
                A(f"s_add_u32 m0, s{sLX}, {slot * 16384 + n * 1024}")
                vm.issue(f"buffer_load_dwordx4 v{vX[n]}, s[{dX}:{dX+3}], s{sKX} offen lds", f"st{s}")
            for rg in range(2):
                for u in range(3):
                    A(f"s_add_u32 m0, s{sLW}, {slot * 24576 + u * 2048 + rg * 1024}")
                    vm.issue(f"buffer_load_dwordx4 v{vW[3*rg+u]}, s[{dW}:{dW+3}], s{sKW} offen lds", f"st{s}")

            if s == cfg.x7:
                A(f"s_add_u32 s{sKX}, s{sKS}, {6 - s}")
                A(f"s_and_b32 s{sKX}, s{sKX}, 7")
                A(f"s_lshl_b32 s{sKX}, s{sKX}, 7")
                A(f"s_add_u32 s{sKX}, s{sKX}, s{sXB}")
                for n in range(4):
                    A(f"s_add_u32 m0, s{sLX}, {3 * 16384 + n * 1024}")
                    vm.issue(f"buffer_load_dwordx4 v{vX[n]}, s[{dX}:{dX+3}], s{sKX} offen lds", "x7")

        ntouch = [0]

        def touch(items):
            A(f"s_lshl2_add_u32 s80, s2, s{sW}")
            for ptr, size in items:
                lo = size * cfg.tskip // 8 if ptr in (pWQKV, pW1) else 0
                n = -(-(size - lo) // (128 * 1024))
                mask = (1 << n) - 1
                if ptr == pX:
                    mask &= ~(((1 << cfg.tskip) - 1) * 0x101)
                k = ntouch[0]; ntouch[0] += 1
                A(f"s_mul_i32 s81, s80, {n * 128}")
                if lo:
                    A(f"s_add_u32 s81, s81, {lo}")
                A(f"v_lshl_add_u32 v{breg + 2 * k}, v0, 7, s81")
                A(f"v_min_u32 v{breg + 2 * k}, {size - 4}, v{breg + 2 * k}")
                A(f"s_mov_b64 exec, {mask}")
                vm.issue(f"global_load_dword v{breg + 2 * k + 1}, v{breg + 2 * k}, s[{ptr}:{ptr+1}]", "touch")
                A("s_mov_b64 exec, -1")
        T1 = [(pWQKV, 1572864), (pW1, 1409024), (pX, 2097152)]
        T2 = [(pW2, 1409024), (pWO, 524288)]

        if cfg.touch1 == 2:
            touch(T1 + (T2 if cfg.touch2 == 1 else []))
        stage(0)
        if cfg.touch1 != 2:
            touch((T1 if cfg.touch1 == 1 else []) + (T2 if cfg.touch2 == 1 else []))
        stage(1)
        srd(A, dW2, pW2, 1409024)
        srd(A, dWO, pWO, 524288)
        A(f"s_mul_i32 s80, s{sRT}, {RT_STRIDE}")
        A(f"s_add_u32 s{dAH}, s{pWS}, s80")
        A(f"s_addc_u32 s{dAH+1}, s{pWS+1}, 0")
        A(f"s_mov_b32 s{dAH+2}, {NSTEP_H * 2048}")
        A(f"s_mov_b32 s{dAH+3}, 0x20000")
        A(f"s_add_u32 s{dAO}, s{dAH}, {NSTEP_H * 2048}")
        A(f"s_addc_u32 s{dAO+1}, s{dAH+1}, 0")
        A(f"s_mov_b32 s{dAO+2}, {32 * 2048}")
        A(f"s_mov_b32 s{dAO+3}, 0x20000")
        srd(A, dOUT, pOUT, 2097152)
        srd(A, dB2, pB2, 1024)
        srd(A, dDBG, pDBG, 256)
        A(f"s_lshl3_add_u32 s{sFH}, s{sRT}, s{sCT}")
        A(f"s_lshl2_add_u32 s{sFH}, s{sFH}, s{sW}")
        A(f"s_lshl_b32 s{sFH}, s{sFH}, 7")
        A(f"s_add_u32 s{sFH}, s{sFH}, {WS_FLAG}")
        A(f"s_add_u32 s{sFO}, s{sFH}, 16")
        A(f"s_load_dword s{sPOLL}, s[{pWS}:{pWS+1}], s{sFH} glc")
        A(f"s_lshl_b32 s80, s{sCT}, 7")
        A(f"v_lshl_add_u32 v{vW2a}, v{vrow}, 10, v{vgsw}")
        A(f"v_add_u32 v{vW2a}, s80, v{vW2a}")
        A(f"v_add_u32 v{vW2b}, {8192 - 1024}, v{vW2a}")
        A(f"v_lshrrev_b32 v{t0}, 5, v0")
        A(f"v_bfe_u32 v{t1}, v0, 2, 2")
        A(f"v_lshlrev_b32 v{t2}, 9, v{t0}")
        A(f"v_lshl_add_u32 v{t2}, v{t1}, 7, v{t2}")
        A(f"v_lshrrev_b32 v{t1}, 1, v{t1}")
        A(f"s_and_b32 s80, s{sW}, 1")
        A(f"v_xor_b32 v{t1}, s80, v{t1}")
        A(f"v_lshl_add_u32 v{t2}, v{t1}, 6, v{t2}")
        A(f"v_bfe_u32 v{t1}, v0, 4, 1")
        A(f"v_lshl_add_u32 v{t2}, v{t1}, 5, v{t2}")
        A(f"v_and_b32 v{t1}, 3, v0")
        A(f"v_lshl_add_u32 v{t2}, v{t1}, 3, v{t2}")
        A(f"v_xor_b32 v{t3}, 64, v{t2}")
        A(f"v_add_u32 v{vtr+0}, s{sLX}, v{t2}")
        A(f"v_add_u32 v{vtr+1}, s{sLX}, v{t3}")
        A(f"v_add_u32 v{vtr+2}, s{sLW}, v{t2}")
        A(f"v_add_u32 v{vtr+3}, s{sLW}, v{t3}")
        A(f"v_add_u32 v{vtr+4}, 49152, v{vtr+2}")
        A(f"v_add_u32 v{vtr+5}, 49152, v{vtr+3}")
        A(f"s_lshl_b32 s{sSA}, s{sW}, 11")
        A(f"s_add_u32 s{sSA}, s{sSA}, {L_REST}")
        A(f"v_add_u32 v{vtr+6}, s{sSA}, v{t2}")
        A(f"v_add_u32 v{vtr+7}, s{sSA}, v{t3}")
        A(f"s_lshr_b32 s81, s{sW}, 1")
        A("s_lshl_b32 s82, s81, 10")
        A(f"v_lshl_add_u32 v{vA0}, v0, 4, s82")
        A(f"v_xor_b32 v{vA1}, 0x400, v{vA0}")
        A(f"s_lshl1_add_u32 s81, s{sRT}, s81")
        A("s_lshl_b32 s81, s81, 15")
        A(f"s_lshl1_add_u32 s80, s{sCT}, s80")
        A(f"s_lshl_b32 s{sT}, s80, 6")
        A(f"v_lshl_add_u32 v{t2}, v{t0}, 4, s{sT}")
        A(f"v_and_b32 v{t1}, 31, v0")
        A(f"v_lshl_add_u32 v{vO}, v{t1}, 10, s81")
        A(f"v_add_u32 v{vO}, v{vO}, v{t2}")
        A(f"v_mov_b32 v{vD}, {L_FL}")
        xs, xa, lst, lt = breg + 16, breg + 32, breg + 36, breg + 40
        vPS = breg + 48
        A(f"v_bfe_u32 v{t3}, v0, 1, 3")
        A(f"v_xor_b32 v{t3}, v{t3}, v{t0}")
        A(f"v_lshl_add_u32 v{t3}, v{t3}, 4, s{sLX}")
        A(f"v_lshl_add_u32 v{xa}, v{t1}, 7, v{t3}")
        for p in range(1, 4):
            A(f"v_xor_b32 v{xa + p}, {32 * p}, v{xa}")
        for q in range(4):
            A(f"v_mov_b32 v{lst + q}, 0")
        A(f"s_lshl_b32 s80, s{sW}, 9")
        A(f"s_add_u32 s80, s80, {L_PS}")
        A(f"v_lshl_add_u32 v{vPS}, v0, 3, s80")
        A(f"s_mov_b32 s{sMASK}, 0xffff0000")

        def stat_valu():
            va = []
            for q in range(16):
                a, b = lt + 2 * (q % 2), lt + 2 * (q % 2) + 1
                va.append(f"v_lshlrev_b32 v{a}, 16, v{xs + q}\nv_and_b32 v{b}, s{sMASK}, v{xs + q}\n"
                          f"v_add_f32 v{lst}, v{lst}, v{a}\nv_add_f32 v{lst+1}, v{lst+1}, v{b}\n"
                          f"v_fmac_f32 v{lst+2}, v{a}, v{a}\nv_fmac_f32 v{lst+3}, v{b}, v{b}")
            return va
        A(f"s_mul_i32 s81, s{sW}, 22")
        if cfg.rot2 > 1:
            A(f"s_and_b32 s82, s{sRT}, {cfg.rot2 - 1}")
            A("s_mul_i32 s80, s82, 22")
            A(f"s_lshr_b32 s80, s80, {cfg.rot2.bit_length() - 1}")
            A("s_add_u32 s80, s80, s81")
            A(f"s_add_u32 s{sEND}, s81, 22")
            A(f"s_mul_i32 s{sO0}, s82, {8 // cfg.rot2}")
        else:
            A("s_mov_b32 s80, s81")
            A(f"s_mov_b32 s{sO0}, 0")
        A(f"s_mov_b32 s{sS2}, s80")

        xr, br = acc + 16, acc + 24
        for s in range(6):
            vm.wait(f"st{s}")
            A("s_barrier")
            if s in (0, 2, 4):
                self.stamp(f"b{s}")
            if cfg.touch2 == s + 2:
                touch(T2)
            if s == 0:
                for j in range(2):
                    vm.issue(f"buffer_load_dwordx4 {vr(br + 4 * j, 4)}, v{t2}, s[{dB2}:{dB2+3}], 0 offen offset:{32 * j}", "xb")
            if s == 4:
                A("s_mov_b64 exec, 1")
                vm.issue(f"buffer_load_dword v{vP}, off, s[{dDBG}:{dDBG+3}], 0 sc1", "tag")
                A("s_mov_b64 exec, -1")
            stage(s + 2)
            if s == cfg.x7:
                vm.wait("x7")
                for p in range(4):
                    A(f"ds_read_b128 {vr(xs + 4 * p, 4)}, v{xa + p} offset:{3 * 16384}")
                A("s_waitcnt lgkmcnt(0)")
            if s == 5:
                vm.wait("tag")
                A(f"v_readfirstlane_b32 s{sTAG}, v{vP}")
                A(f"s_cmp_eq_u32 s{sTAG}, 0")
                A("s_cbranch_scc1 L_tag_wait")
                A("L_tag_ok:")
                self.cold += ["L_tag_wait:", f"s_mov_b32 s80, {SPIN}", "s_mov_b64 exec, 1", "L_tag_lp:",
                              f"buffer_load_dword v{vP}, off, s[{dDBG}:{dDBG+3}], 0 sc1",
                              "s_waitcnt vmcnt(0)", f"v_readfirstlane_b32 s{sTAG}, v{vP}", "s_sub_u32 s80, s80, 1", "s_cbranch_scc1 L_tag_out",
                              f"s_cmp_eq_u32 s{sTAG}, 0", "s_cbranch_scc1 L_tag_lp", "L_tag_out:", "s_mov_b64 exec, -1", "s_branch L_tag_ok"]
                A(f"s_mov_b32 s{sTAG+1}, s{sTAG}")
                A(f"v_mov_b32 v{vP}, s{sTAG}")
                A(f"ds_write_b32 v{vD}, v{vP} offset:256")
            if s >= cfg.x7:
                nst = 6 - cfg.x7
                for x in stat_valu()[16 * (s - cfg.x7) // nst:16 * (s - cfg.x7 + 1) // nst]:
                    A(x)
        A(f"v_add_f32 v{lst}, v{lst}, v{lst+1}")
        A(f"v_add_f32 v{lst+1}, v{lst+2}, v{lst+3}")
        A(f"ds_write_b64 v{vPS}, {vr(lst, 2)}")
        vm.wait("st6", " lgkmcnt(0)")
        A("s_barrier")
        self.stamp("b6")

        def slots_of(kx, kw):
            return [("X", kx, 0), ("X", kx, 1), ("W", kw, 0), ("W", kw, 1), ("W", kw, 2)]
        free = [("R", 0, 0), ("X", 1, 0), ("X", 1, 1)] + slots_of(2, 2)
        where = {}

        def lds_imm(sl):
            reg, k, idx = sl
            return k * 16384 + idx * 2048 if reg == "X" else k * 24576 + idx * 2048

        def kstep(n, sDst, shift):
            if n >= 22:
                return [f"s_add_u32 s{sDst}, s{sO0}, {n - 22}", f"s_and_b32 s{sDst}, s{sDst}, 7",
                        f"s_lshl3_add_u32 s{sDst}, s{sW}, s{sDst}", f"s_lshl_b32 s{sDst}, s{sDst}, {shift}"]
            out = [f"s_add_u32 s{sDst}, s{sS2}, {n}"]
            if cfg.rot2 > 1:
                out += [f"s_cmp_ge_u32 s{sDst}, s{sEND}", "s_cselect_b32 s80, 22, 0", f"s_sub_u32 s{sDst}, s{sDst}, s80"]
            return out + [f"s_lshl_b32 s{sDst}, s{sDst}, {shift}"]

        def issue_w2(n):
            sl = free.pop(0)
            where[n] = sl
            base = {"X": sLX, "W": sLW, "R": sSA}[sl[0]]
            d = dW2 if n < 22 else dWO
            A(f"s_add_u32 m0, s{base}, {lds_imm(sl)}")
            for x in kstep(n, 82, 14):
                A(x)
            vm.issue(f"buffer_load_dwordx4 v{vW2a}, s[{d}:{d+3}], s82 offen lds", f"w{n}")
            vm.issue(f"buffer_load_dwordx4 v{vW2b}, s[{d}:{d+3}], s82 offen offset:1024 lds", f"w{n}")

        def tr_reads(n, dst):
            reg, k, idx = where[n]
            if reg == "R":
                a, imm = vtr + 6, 0
            elif reg == "X":
                a, imm = vtr, lds_imm(where[n])
            elif k < 2:
                a, imm = vtr + 2, lds_imm(where[n])
            else:
                a, imm = vtr + 4, lds_imm(where[n]) - 49152
            return [f"ds_read_b64_tr_b16 {vr(dst + 4 * nt + 2 * j, 2)}, v{a + nt} offset:{imm + 1024 * j}"
                    for nt in range(2) for j in range(2)]

        R0 = 22 - R - cfg.opre - 1
        inreg = lambda n: R0 <= n < R0 + NREG
        no = 8 // cfg.rot2 if cfg.rot2 > 1 else 0
        nh = -(-22 // cfg.rot2) if cfg.rot2 > 1 else 0
        first = list(range(R0, R0 + nh)) + list(range(22, 22 + no))
        order = first + [n for n in range(30) if inreg(n) and n not in first]
        order += [n for n in range(30) if n not in order]
        breg_of = {}
        for n in order:
            if inreg(n):
                breg_of[n] = breg + 8 * len(breg_of)
        for n in order[:cfg.pre7]:
            issue_w2(n)
        vm.wait("st7")
        A("s_barrier")
        self.stamp("b7")
        free.extend(slots_of(0, 0))
        pending = []
        done = 0
        for k in range(cfg.pre7, 30):
            if pending:
                A("s_waitcnt lgkmcnt(0)")
                free.extend(pending); pending = []
            if not free:
                assert ("X", 3, 0) not in where.values()
                self.lds_spin(vD, 0, 4, bwork, [])
                free.extend(slots_of(3, 1))
            if k == cfg.pause:
                A(f"s_cmp_eq_u32 s{sTYPE}, 0")
                A("s_cbranch_scc1 L_nopause")
                self.lds_spin(vD, 48, 4, bwork, [], sleep=1)
                A("L_nopause:")
            if k == 30 - cfg.hpre and not cfg.nowait:
                A(self.poll_issue(sFH, 4))
            issue_w2(order[k])
            if k == 8:
                for j in range(2):
                    vm.issue(f"buffer_load_dwordx4 {vr(xr + 4 * j, 4)}, v{vO}, s[{dX}:{dX+3}], 0 offen offset:{32 * j}", "xb")
                if cfg.otouch:
                    vm.issue(f"buffer_load_dword v{vP}, v{vO}, s[{dOUT}:{dOUT+3}], 0 offen", "xb")
            if k == 16:
                self.stamp("w2half")
            vm.limit(cfg.thr if k < cfg.pause or not cfg.pause else cfg.thr2)
            while done <= k and not vm.has(f"w{order[done]}") and len(pending) < 3:
                n = order[done]; done += 1
                if inreg(n):
                    for x in tr_reads(n, breg_of[n]):
                        A(x)
                    pending.append(where[n])
            if k == 20:
                vm.wait("xb")
                for j in range(2):
                    for base in (xr, br):
                        A(f"v_permlane32_swap_b32 v{base + 4 * j}, v{base + 4 * j + 2}")
                        A(f"v_permlane32_swap_b32 v{base + 4 * j + 1}, v{base + 4 * j + 3}")
                for q in range(8):
                    A(f"v_lshlrev_b32 v{acc + 2 * q}, 16, v{xr + q}")
                    A(f"v_and_b32 v{acc + 2 * q + 1}, s{sMASK}, v{xr + q}")
                    A(f"v_lshlrev_b32 v{acc + 32 + 2 * q}, 16, v{br + q}")
                    A(f"v_and_b32 v{acc + 33 + 2 * q}, s{sMASK}, v{br + q}")
                for q in range(16):
                    A(f"v_add_f32 v{acc + q}, v{acc + q}, v{acc + 32 + q}")
        assert not pending and done > max(k for k, n in enumerate(order) if inreg(n))
        assert not vm.has("w0")
        for x in tr_reads(0, bwork):
            A(x)
        self.stamp("w2iss")
        if not cfg.nowait:
            self.wait_flags(sFH, 4, sTAG, issued=cfg.hpre > 0)
        self.stamp("hflag")

        def a_loads(n):
            b = aring + 8 * (n % (R + 1))
            d = dAH if n < 22 else dAO
            for x in kstep(n, 81, 11):
                A(x)
            vm.issue(f"buffer_load_dwordx4 {vr(b, 4)}, v{vA0}, s[{d}:{d+3}], s81 offen sc1", f"a{n}")
            vm.issue(f"buffer_load_dwordx4 {vr(b + 4, 4)}, v{vA1}, s[{d}:{d+3}], s81 offen sc1", f"a{n}")

        for n in range(R):
            a_loads(n)
        for n in range(30):
            nxt = n + R
            owait = not (cfg.nowait or cfg.nochain)
            if nxt == 22 - cfg.opre and cfg.opre and owait:
                A(self.poll_issue(sFO, 4))
            if nxt == 22:
                self.stamp("preO")
                if owait:
                    self.wait_flags(sFO, 4, sTAG, issued=cfg.opre > 0)
                self.stamp("oflag")
            if nxt < 30:
                a_loads(nxt)
            bsrc = breg_of[n] if inreg(n) else bwork + 8 * (n % 2)
            vm.wait(f"a{n}", "" if inreg(n) else " lgkmcnt(0)")
            b = aring + 8 * (n % (R + 1))
            mf = []
            for blk in ((1, 2, 3, 0) if n == 29 else (0, 1, 2, 3)):
                nt, tt = blk & 1, blk >> 1
                d = acc + 16 * blk
                c = "0" if (n == 0 and blk) else vr(d, 16)
                mf.append(f"v_mfma_f32_32x32x16_bf16 {vr(d, 16)}, {vr(bsrc + 4 * nt, 4)}, {vr(b + 4 * tt, 4)}, {c}")
            if n + 1 < 30 and not inreg(n + 1):
                mf = interleave(mf, (tr_reads(n + 1, bwork + 8 * ((n + 1) % 2)), 0, 1))
            for x in mf:
                A(x)
        self.stamp("mfend")
        t0 = vtr
        vr0 = t0
        A(f"v_lshl_add_u32 v{vr0}, v0, 4, s{sLX}")
        for blk in range(1, 4):
            for q in range(4):
                A(f"ds_write_b128 v{vr0}, {vr(acc + 16 * blk + 4 * q, 4)} offset:{(blk - 1) * 16384 + q * 1024}")
        for blk in range(1, 4):
            A(f"v_xor_b32 v{t0 + blk}, {blk << 12}, v{vr0}")
        A("s_waitcnt lgkmcnt(0)")
        A("s_barrier")
        self.stamp("rbar")
        for q in range(4):
            for blk in range(1, 4):
                A(f"ds_read_b128 {vr(breg + 16 * blk + 4 * q, 4)}, v{t0 + blk} offset:{(blk - 1) * 16384 + q * 1024}")
        pk = breg
        for q in range(4):
            A(f"s_waitcnt lgkmcnt({9 - 3 * q})")
            for blk in range(1, 4):
                for d in range(2):
                    a = acc + 4 * q + 2 * d
                    A(f"v_pk_add_f32 {vr(a, 2)}, {vr(a, 2)}, {vr(breg + 16 * blk + 4 * q + 2 * d, 2)}")
            for d in range(2):
                A(f"v_cvt_pk_bf16_f32 v{pk + 2 * q + d}, v{acc + 4 * q + 2 * d}, v{acc + 4 * q + 2 * d + 1}")
            if q % 2 == 1:
                p = pk + 2 * (q - 1)
                A(f"v_permlane32_swap_b32 v{p}, v{p + 2}")
                A(f"v_permlane32_swap_b32 v{p + 1}, v{p + 3}")
                A(f"buffer_store_dwordx4 {vr(p, 4)}, v{vO}, s[{dOUT}:{dOUT+3}], 0 offen offset:{16 * (q - 1)} {cfg.outfl.replace('_', ' ')}")
        if cfg.stamps or cfg.amp:
            A("s_waitcnt vmcnt(0)")
            self.stamp("end")
            self.stamp("real1", real=True)
            self.stamp_out("L")
        if cfg.amp:
            A("s_sub_u32 s98, s98, s96")
            A("s_lshr_b32 s98, s98, 1" if cfg.ampcyc else "s_mul_i32 s98, s98, 10")
            A("s_min_u32 s98, s98, 200000")
            A("s_memrealtime s[96:97]")
            A("L_amp:")
            A("s_memrealtime s[100:101]")
            A("s_waitcnt lgkmcnt(0)")
            A("s_sub_u32 s100, s100, s96")
            A("s_cmp_lt_u32 s100, s98")
            A("s_cbranch_scc1 L_amp")
        A("s_endpgm")
        self.flush_cold()
        self.inL = False
        self.stamped = self.stamped[:2]

    def cwave(self):
        A, cfg = self.A, self.cfg
        dWS, dB1, dDBG = 32, 36, 40
        self.dWS = dWS
        sR, sC, sMASK, sEPS, sL2E, sA2, sFL, sPERM, sHI = 84, 85, 86, 88, 90, 92, 93, 94, 44
        self.sc = dict(sR=sR, sC=sC, sMASK=sMASK, sEPS=sEPS, sL2E=sL2E, sA2=sA2, sFL=sFL, sPERM=sPERM, sHI=sHI)
        al = Alloc(1, 253)
        V = self.V = {}
        V["acc"] = al(96, 4)
        V["fr"] = al(40, 4)
        V["cs"] = al(12, 4)
        V["sel"] = al(4, 4)
        V["aug"] = al(20, 4)
        V["perm"] = al(4, 4)
        V["ones"] = al(4, 4)
        V["rT"] = al(32, 4)
        V["xa"] = al(8)
        V["wa"] = al(4)
        V["st"] = al(4)
        V["t"] = al(8, 4)
        V["r"] = al(4, 2)
        V["b1"] = al(3)
        V["tok"] = al(2)
        V["l16"] = al(1)
        V["one"] = al(1)
        V["fl"] = al(1)
        V["tag"] = al(1)
        V["csa"] = 1
        t = V["t"]
        A("L_C:")
        if cfg.code_pf == 1:
            A("s_getpc_b64 s[80:81]")
            A("L_pc:")
            A(f"s_sub_u32 s80, s80, L_pc-{NAME}")
            A("s_subb_u32 s81, s81, 0")
            A("s_lshr_b32 s82, s2, 3")
            A(f"s_lshl2_add_u32 s82, s82, s{sW}")
            A(f"v_and_b32 v{t}, 3, v0")
            A(f"v_lshl_add_u32 v{t}, v{t}, 7, s82")
            A(f"v_lshlrev_b32 v{t}, 7, v{t}")
            A(f"v_min_u32 v{t}, L_end-{NAME}-4, v{t}")
            A("s_mov_b64 exec, 15")
            A(f"global_load_dword v{V['rT']}, v{t}, s[80:81]")
            A("s_mov_b64 exec, -1")
        A(f"s_lshr_b32 s{sR}, s{sW}, 1")
        A(f"s_and_b32 s{sC}, s{sW}, 1")
        A(f"s_mov_b32 s{sMASK}, 0xffff0000")
        A(f"s_mov_b32 s{sEPS}, 0x358637bd")
        A(f"s_mov_b32 s{sEPS+1}, 0x358637bd")
        A(f"s_mov_b32 s{sL2E}, 0x3fb8aa3b")
        A(f"s_mov_b32 s{sL2E+1}, 0x3fb8aa3b")
        A(f"s_mov_b32 s{sPERM}, 0x07060302")
        A(f"s_mov_b32 s{sHI}, 0xffff0000")
        A(f"s_mov_b32 s{sHI+1}, 0xffff0000")
        A(f"v_and_b32 v{t}, 31, v0")
        A(f"v_lshrrev_b32 v{t+1}, 5, v0")
        A(f"s_lshl_b32 s80, s{sW}, 5")
        A(f"v_add_u32 v{t+2}, s80, v{t}")
        A(f"v_lshlrev_b32 v{V['tok']}, 2, v{t+2}")
        A(f"v_add_u32 v{V['tok']}, {L_MISC}, v{V['tok']}")
        A(f"v_xor_b32 v{V['tok']+1}, 0x80, v{V['tok']}")
        A(f"v_bfe_u32 v{t+3}, v0, 1, 3")
        A(f"v_xor_b32 v{t+3}, v{t+3}, v{t+1}")
        A(f"s_lshl_b32 s80, s{sR}, 2")
        A(f"v_xor_b32 v{t+3}, s80, v{t+3}")
        A(f"v_lshlrev_b32 v{t+3}, 4, v{t+3}")
        A(f"v_lshl_add_u32 v{V['xa']}, v{t+2}, 7, v{t+3}")
        for p in range(1, 4):
            A(f"v_xor_b32 v{V['xa']+2*p}, {32 * p}, v{V['xa']}")
        for p in range(4):
            A(f"v_xor_b32 v{V['xa']+2*p+1}, 0x1000, v{V['xa']+2*p}")
        A(f"v_bfe_u32 v{t+2}, v0, 2, 2")
        A(f"v_lshlrev_b32 v{t+3}, 10, v{t+1}")
        A(f"v_lshl_add_u32 v{t+3}, v{t+2}, 7, v{t+3}")
        A(f"v_lshrrev_b32 v{t+2}, 1, v{t+2}")
        A(f"v_xor_b32 v{t+2}, s{sC}, v{t+2}")
        A(f"v_lshl_add_u32 v{t+3}, v{t+2}, 6, v{t+3}")
        A(f"v_bfe_u32 v{t+2}, v0, 4, 1")
        A(f"v_lshl_add_u32 v{t+3}, v{t+2}, 5, v{t+3}")
        A(f"v_and_b32 v{t+2}, 3, v0")
        A(f"v_lshl_add_u32 v{t+3}, v{t+2}, 3, v{t+3}")
        A(f"s_mul_i32 s80, s{sR}, 12288")
        A(f"s_sub_u32 s81, {L_W}, s80")
        A(f"s_add_u32 s80, s80, {L_W}")
        A(f"v_add_u32 v{V['wa']}, s80, v{t+3}")
        A(f"v_add_u32 v{V['wa']+1}, s81, v{t+3}")
        A(f"v_add_u32 v{V['wa']+2}, 49152, v{V['wa']}")
        A(f"v_add_u32 v{V['wa']+3}, 49152, v{V['wa']+1}")
        A(f"v_lshrrev_b32 v{t+2}, 4, v0")
        A(f"v_bfe_u32 v{t+3}, v0, 2, 2")
        A(f"v_mov_b32 v{V['ones']}, 0x3f803f80")
        A(f"v_cmp_eq_u32 vcc, v{t+2}, v{t+3}")
        for q in range(1, 4):
            A(f"v_mov_b32 v{V['ones']+q}, v{V['ones']}")
        for q in range(4):
            A(f"v_cndmask_b32 v{V['sel']+q}, 0, v{V['ones']}, vcc")
        for q in range(5):
            A(f"v_mov_b32 v{V['aug']+4*q+2}, 0")
            A(f"v_mov_b32 v{V['aug']+4*q+3}, 0")
        for q in range(4):
            A(f"v_mov_b32 v{V['st']+q}, 0")
        A(f"v_lshlrev_b32 v{V['l16']}, 4, v0")
        A(f"v_mov_b32 v{V['one']}, 1")
        A(f"v_mov_b32 v{V['fl']}, {L_FL}")
        A(f"s_mov_b32 s{sPERM+1}, 0x01000100")
        A(f"s_mul_i32 s80, s{sW}, 768")
        A(f"s_add_u32 s80, s80, {L_CS}")
        A("v_lshl_add_u32 v1, v0, 2, s80")
        A(f"s_xor_b32 s81, s{sW}, 2")
        A("s_mul_i32 s81, s81, 768")
        A(f"s_add_u32 s81, s81, {L_CS}")
        A("v_lshl_add_u32 v2, v0, 2, s81")
        A(f"s_lshl_b32 s80, s{sW}, 2")
        A(f"v_add_u32 v3, s80, v{V['fl']}")
        A(f"v_lshl_add_u32 v{t+2}, v0, 2, v{V['fl']}")
        A(f"ds_write_b32 v{t+2}, v{V['st']}")
        A("s_waitcnt lgkmcnt(0)")
        srd(A, dWS, pWS, WS_END)
        A(f"s_lshl1_add_u32 s80, s{sI}, s{sR}")
        A(f"s_mul_i32 s{sA2}, s80, {RT_STRIDE}")
        A(f"s_lshr_b32 s81, s{sG}, 1")
        A("s_lshl_b32 s80, s80, 5")
        A("s_add_u32 s80, s80, s81")
        A(f"s_and_b32 s81, s{sG}, 1")
        A(f"s_lshl1_add_u32 s81, s81, s{sC}")
        A("s_lshl_b32 s80, s80, 5")
        A("s_add_u32 s80, s80, s81")
        A(f"s_lshl_b32 s{sFL}, s80, 2")
        A(f"s_add_u32 s{sFL}, s{sFL}, {WS_FLAG}")
        A(f"s_lshl3_add_u32 s80, s2, s{sWAVE}")
        A(f"s_cmp_eq_u32 s80, {TAG_WG * 8}")
        A("s_cbranch_scc1 L_tagger")
        self.cold += ["L_tagger:", f"s_load_dword s64, s[{pWS}:{pWS+1}], s{sFL} glc",
                      f"s_mov_b32 s{dDBG}, s{pDBG}", f"s_mov_b32 s{dDBG+1}, s{pDBG+1}", f"s_mov_b32 s{dDBG+2}, 256", f"s_mov_b32 s{dDBG+3}, 0x20000",
                      "s_waitcnt lgkmcnt(0)", "s_mul_i32 s64, s64, 0x9e3779b1", "s_add_u32 s64, s64, 0x7f4a7c15", "s_or_b32 s64, s64, 1",
                      f"v_mov_b32 v{t+2}, s64", "s_mov_b64 exec, 1",
                      f"buffer_store_dword v{t+2}, off, s[{dDBG}:{dDBG+3}], 0 sc1", "s_mov_b64 exec, -1", "s_branch L_noclr"]
        A("L_noclr:")
        A(f"s_cmp_eq_u32 s{sTYPE}, 0")
        A("s_cbranch_scc1 L_attn")
        srd(A, dB1, pB1, 2752)
        A(f"s_add_u32 s80, s83, s{sC}")
        A("s_lshl_b32 s81, s80, 12")
        A(f"s_add_u32 s{sA2}, s{sA2}, s81")
        A("s_lshl_b32 s80, s80, 6")
        A(f"v_lshlrev_b32 v{t+2}, 1, v{t}")
        A(f"v_lshl_add_u32 v{t+2}, v{t+1}, 20, v{t+2}")
        for u in range(3):
            A(f"buffer_load_ushort v{V['b1']+u}, v{t+2}, s[{dB1}:{dB1+3}], s80 offen offset:{128 * u}")
        self.kloop(False)
        self.mlp_tail()
        A("L_attn:")
        for u in range(3):
            A(f"v_mov_b32 v{V['b1']+u}, 0")
        A(f"v_bfe_u32 v{t+2}, v0, 2, 1")
        A(f"v_xor_b32 v{t+2}, v{t+2}, v{t+1}")
        A(f"v_bfe_u32 v{t+3}, v0, 4, 1")
        A(f"v_or_b32 v{t+2}, v{t+2}, v{t+3}")
        A(f"v_bfe_u32 v{t+3}, v0, 3, 1")
        A(f"v_lshl_add_u32 v{t+2}, v{t+2}, 1, v{t+3}")
        A(f"v_bfe_u32 v{t+3}, v0, 1, 1")
        A(f"v_lshl_add_u32 v{t+2}, v{t+2}, 1, v{t+3}")
        A(f"v_and_b32 v{t+3}, 1, v0")
        A(f"v_lshlrev_b32 v{t+3}, 4, v{t+3}")
        A(f"v_mov_b32 v{t+4}, 0x3f80")
        A(f"v_lshlrev_b32 v{t+3}, v{t+3}, v{t+4}")
        for q in range(4):
            A(f"v_cmp_eq_u32 vcc, {q}, v{t+2}")
            A(f"v_cndmask_b32 v{V['perm']+q}, 0, v{t+3}, vcc")
        sPG, sFK = 46, 49
        A(f"s_lshl1_add_u32 s{sPG}, s{sG}, s{sC}")
        A(f"s_lshl4_add_u32 s{sFK}, s{sPG}, s{sI}")
        A(f"s_lshl_b32 s{sFK}, s{sFK}, 7")
        A(f"s_add_u32 s{sFK}, s{sFK}, {WS_FLAG + FL_KV}")
        A(f"s_cmp_eq_u32 s{sR}, 0")
        A("s_cbranch_scc0 L_nopre")
        A(f"s_load_dword s64, s[{pWS}:{pWS+1}], s{sFK} glc")
        A("L_nopre:")
        self.kloop(True)
        self.attn_tail()

    def kloop(self, attn):
        A, V, sc = self.A, self.V, self.sc
        acc, fr, cs, st, t, aug = V["acc"], V["fr"], V["cs"], V["st"], V["t"], V["aug"]

        def reads(n):
            s, p = divmod(n, 4)
            slot = s % 3
            f = fr + 20 * (n % 2)
            wa = V["wa"] + (p >> 1) + (2 if slot == 2 else 0)
            wi = (0 if slot == 2 else slot * 24576) + p * 6144
            x = [f"ds_read_b128 {vr(f + 4 * a, 4)}, v{V['xa'] + 2 * p + a} offset:{(slot if s < 7 else 3) * 16384}" for a in range(2)]
            w = [f"ds_read_b64_tr_b16 {vr(f + 8 + 4 * u + 2 * j, 2)}, v{wa} offset:{wi + u * 2048 + j * 512}"
                 for u in range(3) for j in range(2)]
            return [x[0]] + w[:2] + [x[1]] + w[2:]

        def mfma(dst, xf, wf, u, c):
            a, b = (xf, wf) if (attn and u < 2) else (wf, xf)
            return f"v_mfma_f32_32x32x16_bf16 {vr(dst, 16)}, {vr(a, 4)}, {vr(b, 4)}, {c}"

        def stats(f):
            va = []
            for q in range(4):
                a, b = t + 2 * (q % 2), t + 2 * (q % 2) + 1
                va.append(f"v_lshlrev_b32 v{a}, 16, v{f + q}\nv_and_b32 v{b}, s{sc['sMASK']}, v{f + q}")
                va.append(f"v_add_f32 v{st}, v{st}, v{a}\nv_add_f32 v{st+1}, v{st+1}, v{b}")
                va.append(f"v_fmac_f32 v{st+2}, v{a}, v{a}\nv_fmac_f32 v{st+3}, v{b}, v{b}")
            return va[:1] if self.cfg.nostat else va

        tok = V["tok"]
        ms, r0 = aug + 1, V["r"]
        fin = [f"v_add_f32 v{st}, v{st}, v{t+4}\nv_add_f32 v{st+2}, v{st+2}, v{t+5}"] + self.stats_final(st, t, ms, r0, sc["sMASK"])
        put1 = [f"ds_write_b32 v{tok}, v{ms} offset:512", f"ds_write_b32 v{tok}, v{r0} offset:0",
                f"v_perm_b32 v{aug}, v{ms}, v{ms}, s{sc['sPERM'] + 1}"]
        put = [f"ds_write_b32 v1, v{cs + 4 * u} offset:{256 * u}" for u in range(3)] + [f"ds_write_b32 v3, v{V['one']}"]
        get = [f"ds_read_b32 v{cs + 4 * u + 1}, v2 offset:{256 * u}" for u in range(3)]
        get += [f"ds_read_b32 v{aug + 5}, v{tok + 1} offset:512", f"ds_read_b32 v{V['r'] + 2}, v{tok + 1} offset:0"]
        prep = [f"v_add_f32 v{cs + 4 * u}, v{cs + 4 * u}, v{cs + 4 * u + 1}" for u in range(3)]
        prep += [f"v_and_b32 v{cs + 4 * u + 1}, s{sc['sMASK']}, v{cs + 4 * u}" for u in range(3)]
        prep += [f"v_sub_f32 v{cs + 4 * u + 1}, v{cs + 4 * u}, v{cs + 4 * u + 1}" for u in range(3)]
        prep += [f"v_and_b32 v{cs + 4 * u + 2}, s{sc['sMASK']}, v{cs + 4 * u + 1}" for u in range(3)]
        prep += [f"v_perm_b32 v{aug + 8 + 4 * u}, v{cs + 4 * u + 1}, v{cs + 4 * u}, s{sc['sPERM']}" for u in range(3)]
        prep += [f"v_sub_f32 v{cs + 4 * u + 2}, v{cs + 4 * u + 1}, v{cs + 4 * u + 2}" for u in range(3)]
        prep += [f"v_perm_b32 v{aug + 9 + 4 * u}, v{V['b1'] + u}, v{cs + 4 * u + 2}, s{sc['sPERM']}" for u in range(3)]

        self.stamp("rdy")
        A("s_barrier")
        self.stamp("b0")
        for x in reads(0):
            A(x)
        for n in range(32):
            s, p = divmod(n, 4)
            f = fr + 20 * (n % 2)
            A("s_waitcnt lgkmcnt(0)" + (" vmcnt(0)" if n == 24 else ""))
            if self.cfg.kdiag and n in (self.cfg.kdiag - 1, self.cfg.kdiag + 3):
                self.stamp(f"pre{n}")
            if self.cfg.cslow and n < 28:
                A(f"s_sleep {self.cfg.cslow}")
            if p == 3 and s < 7:
                A("s_barrier")
            if self.cfg.kdiag and self.cfg.kdiag - 1 <= n < self.cfg.kdiag + 4:
                self.stamp(f"n{n}")
            prim = []
            for u in range(3):
                for a in range(2):
                    d = acc + 16 * (2 * u + a)
                    prim.append(mfma(d, f + 4 * a, f + 8 + 4 * u, u, "0" if n == 0 else vr(d, 16)))
                if p < 2 and not (self.cfg.nocs and n > 0):
                    d = cs + 4 * u
                    prim[-1] = f"v_mfma_f32_16x16x32_bf16 {vr(d, 4)}, {vr(V['sel'], 4)}, {vr(f + 8 + 4 * u, 4)}, " + ("0" if n == 0 else vr(d, 4)) + "\n" + prim[-1]
            def checked(off, gets, vT):
                slow, back = self.label("xs"), self.label("xb")
                rd = [self.lds_flag_read(V["fl"], off, 4, vT)] + gets
                chk = ["s_waitcnt lgkmcnt(0)"] + self.lds_flag_test(4, vT) + [f"s_cbranch_scc1 {slow}", f"{back}:"]
                B = Asm()
                B(f"{slow}:")
                self.lds_spin(V["fl"], off, 4, vT, gets, A=B)
                B(f"s_branch {back}")
                self.cold += B.lines
                return rd, chk
            if n < 28:
                extra = []
                if n == 24:
                    extra = [f"v_lshlrev_b32 v{V['b1'] + u}, 16, v{V['b1'] + u}" for u in range(3)]
                    extra += [f"ds_read_b32 v{V['tag']}, v{V['fl']} offset:256"]
                if n == 25:
                    extra = [f"s_lshl_b32 s80, s{sW}, 9", f"s_add_u32 s80, s80, {L_PS}", f"v_lshl_add_u32 v{t+6}, v0, 3, s80"]
                if n == 26:
                    extra = [f"ds_read_b64 {vr(t + 4, 2)}, v{t+6}"]
                seq = interleave(prim, (reads(n + 1) + extra, 0, 3), (stats(f), 0, 5))
            elif n == 28:
                seq = interleave(prim, (reads(29), 0, 3), (fin[:10], 0, 5))
            elif n == 29:
                seq = interleave(prim, (reads(30), 0, 3), (fin[10:], 0, 4), (put1, 5, 5))
            elif n == 30:
                seq = interleave(prim, (reads(31), 0, 2), (put, 3, 3))
            else:
                rd, chk = checked(0, get, t + 4)
                xp = [f"v_perm_b32 v{aug + 4}, v{aug + 5}, v{aug + 5}, s{sc['sPERM'] + 1}"]
                seq = rd + interleave(prim, (chk, 1, 1), (xp + prep, 2, 5))
            for x in seq:
                A(x)
        self.stamp("T1")
        prim = []
        for u in range(3):
            for a in range(2):
                d = acc + 16 * (2 * u + a)
                prim.append(mfma(d, aug + 4 * a, aug + 8 + 4 * u, u, vr(d, 16)))
        if attn:
            rd = [f"v_lshrrev_b32 v{t+2}, 5, v0", f"s_lshl_b32 s80, s{sW}, 7", f"s_add_u32 s80, s80, {L_R}",
                  f"v_lshl_add_u32 v{t+2}, v{t+2}, 4, s80", f"v_xor_b32 v{t+3}, 0x80, v{t+2}"]
            rd += [f"ds_read_b128 {vr(V['rT'] + 16 * a + 4 * j, 4)}, v{t + 2 + a} offset:{32 * j}" for a in range(2) for j in range(4)]
            prim = interleave(prim, (rd, 0, 2))
        for x in prim:
            A(x)
        if attn:
            A("s_waitcnt lgkmcnt(0)")
        self.stamp("aug")

    def stats_final(self, st, t, ms, r0, sMASK):
        return [
            f"v_add_f32 v{st}, v{st}, v{st+1}\nv_add_f32 v{st+2}, v{st+2}, v{st+3}",
            f"v_mov_b32 v{st+1}, v{st}\nv_mov_b32 v{st+3}, v{st+2}",
            f"v_permlane32_swap_b32 v{st}, v{st+1}\nv_permlane32_swap_b32 v{st+2}, v{st+3}",
            f"v_add_f32 v{st}, v{st}, v{st+1}\nv_add_f32 v{st+2}, v{st+2}, v{st+3}",
            f"v_mul_f32 v{st}, 0xbb000000, v{st}",
            f"v_mul_f32 v{st+2}, 0x3b000000, v{st+2}",
            f"v_fma_f32 v{st+2}, -v{st}, v{st}, v{st+2}",
            f"v_max_f32 v{st+2}, 0, v{st+2}",
            f"v_cvt_pk_bf16_f32 v{t}, v{st+2}, v{st+2}",
            f"v_and_b32 v{t}, s{sMASK}, v{t}",
            f"v_add_f32 v{t}, 0x3727c5ac, v{t}",
            f"v_cvt_pk_bf16_f32 v{t}, v{t}, v{t}",
            f"v_and_b32 v{t}, s{sMASK}, v{t}",
            f"v_sqrt_f32 v{t}, v{t}",
            f"v_cvt_pk_bf16_f32 v{ms}, v{st}, v{t}",
            f"v_and_b32 v{t}, s{sMASK}, v{ms}",
            f"v_rcp_f32 v{r0}, v{t}",
        ]

    def mlp_tail(self):
        A, V, sc = self.A, self.V, self.sc
        acc, t, dWS = V["acc"], V["t"], self.dWS
        A(f"s_lshl_b32 s80, s{sc['sC']}, 10")
        A(f"v_add_u32 v{t}, s80, v{V['l16']}")
        A(f"v_xor_b32 v{t+1}, 0x400, v{t}")
        for u in range(3):
            if u == 2:
                A(f"s_bitcmp1_b32 0xea, s{sG}")
                A(f"s_cselect_b32 s80, s{sc['sC']}, 0")
                A("s_cmp_eq_u32 s80, 1")
                A("s_cbranch_scc1 L_mlp_done")
            for a in range(2):
                d = acc + 16 * (2 * u + a)
                pk = V["fr"] + 8 * a
                for q in range(8):
                    A(f"v_pk_mul_f32 {vr(d + 2 * q, 2)}, {vr(d + 2 * q, 2)}, {vr(V['r'] + 2 * a, 2)} op_sel_hi:[1,0]")
                for q in range(16):
                    A(f"v_max_f32 v{d + q}, 0, v{d + q}")
                for q in range(8):
                    A(f"v_pk_mul_f32 {vr(d + 2 * q, 2)}, {vr(d + 2 * q, 2)}, {vr(d + 2 * q, 2)}")
                for s in range(2):
                    for q in range(4 * s, 4 * s + 4):
                        A(f"v_cvt_pk_bf16_f32 v{pk + q}, v{d + 2 * q}, v{d + 2 * q + 1}")
                    if not self.cfg.nost:
                        A(f"buffer_store_dwordx4 {vr(pk + 4 * s, 4)}, v{t + a}, s[{dWS}:{dWS+3}], s{sc['sA2']} offen offset:{2048 * s} sc1")
            A(f"s_add_u32 s{sc['sA2']}, s{sc['sA2']}, 0x2000")
        A("L_mlp_done:")
        if self.cfg.pause:
            A(f"ds_write_b32 v3, v{V['one']} offset:48")
        self.stamp("stored")
        A(f"v_lshlrev_b32 v{t+2}, 9, v0")
        A("s_waitcnt vmcnt(0)")
        self.set_flag(dWS, sc["sFL"], t + 2, 8)
        self.stamp("flag")
        self.stamp_out("mlp")
        A("s_endpgm")
        self.flush_cold()
        self.stamped = self.stamped[:2]

    def phi(self, d, rsrc, pk, tmp):
        A, sc = self.A, self.sc
        e, l = sr(sc["sEPS"], 2), sr(sc["sL2E"], 2)
        for q in range(8):
            A(f"v_pk_fma_f32 {vr(d + 2 * q, 2)}, {vr(d + 2 * q, 2)}, {rsrc(q)[0]}, {e}{rsrc(q)[1]}")
        for q in range(8):
            A(f"v_pk_mul_f32 {vr(tmp + 2 * q, 2)}, {vr(d + 2 * q, 2)}, {l}")
        for q in range(16):
            A(f"v_exp_f32_e64 v{tmp + q}, v{tmp + q} clamp")
            A(f"v_max_f32_e64 v{d + q}, s{sc['sEPS']}, v{d + q}")
        for q in range(8):
            A(f"v_pk_add_f32 {vr(d + 2 * q, 2)}, {vr(d + 2 * q, 2)}, {vr(tmp + 2 * q, 2)}")
        for q in range(8):
            A(f"v_cvt_pk_bf16_f32 v{pk + q}, v{d + 2 * q}, v{d + 2 * q + 1}")

    def attn_tail(self):
        A, V, sc = self.A, self.V, self.sc
        acc, t, dWS, fr, rT = V["acc"], V["t"], self.dWS, V["fr"], V["rT"]
        sR, sC, sHI = sc["sR"], sc["sC"], sc["sHI"]
        hi = sr(sHI, 2)
        if self.cfg.nochain:
            self.stamp_out("att")
            A("s_endpgm")
            self.flush_cold()
            return
        tmp = V["cs"]
        pkf, vf = fr, fr + 16
        for a in range(2):
            self.phi(acc + 16 * a, lambda q: (vr(rT + 16 * a + 2 * q, 2), ""), pkf + 8 * a, tmp)
            d = acc + 32 + 16 * a
            for q in range(8):
                A(f"v_pk_mul_f32 {vr(d + 2 * q, 2)}, {vr(d + 2 * q, 2)}, {vr(rT + 16 * a + 2 * q, 2)}")
            for q in range(8):
                A(f"v_cvt_pk_bf16_f32 v{vf + 8 * a + q}, v{d + 2 * q}, v{d + 2 * q + 1}")
        D1, D2 = acc, acc + 16
        for k in range(4):
            A(f"v_mfma_f32_32x32x16_bf16 {vr(D1, 16)}, {vr(pkf + 4 * k, 4)}, {vr(vf + 4 * k, 4)}, " + ("0" if k == 0 else vr(D1, 16)))
            A(f"v_mfma_f32_32x32x16_bf16 {vr(D2, 16)}, {vr(pkf + 4 * k, 4)}, {vr(V['ones'], 4)}, " + ("0" if k == 0 else vr(D2, 16)))
        sPG, sKV, sZ, sFK, sTAG = 46, 47, 48, 49, 50
        A(f"s_lshl4_add_u32 s80, s{sPG}, s{sI}")
        A(f"s_lshl_b32 s{sKV}, s80, 10")
        A(f"s_add_u32 s{sKV}, s{sKV}, {WS_KVP}")
        A(f"s_lshl_b32 s{sZ}, s80, 7")
        A(f"s_add_u32 s{sZ}, s{sZ}, {WS_ZP}")
        A(f"v_readfirstlane_b32 s{sTAG}, v{V['tag']}")
        A(f"s_lshl_b32 s80, s{sC}, 12")
        A(f"s_add_u32 s80, s80, {L_KVX}")
        vx, vfl = t, t + 1
        A(f"v_add_u32 v{vx}, s80, v{V['l16']}")
        A(f"s_lshl_b32 s80, s{sC}, 2")
        A(f"v_add_u32 v{vfl}, s80, v{V['fl']}")
        A(f"v_lshrrev_b32 v{t+2}, 4, v0")
        A(f"v_lshlrev_b32 v{t+2}, 5, v{t+2}")
        KV, Z = acc + 32, acc + 40
        for e in range(8):
            A(f"v_cndmask_b32 v{KV + e}, v{D1 + e}, v{D1 + 8 + e}, {hi}")
        for e in range(8):
            A(f"v_cndmask_b32 v{Z + e}, v{D2 + 8 + e}, v{D2 + e}, {hi}")
        A(f"s_cmp_eq_u32 s{sR}, 0")
        A("s_cbranch_scc1 L_kv_r0")
        for q in range(4):
            A(f"ds_write_b128 v{vx}, {vr(KV + 4 * q, 4)} offset:{1024 * q}")
        A(f"ds_write_b32 v{vfl}, v{V['one']} offset:16")
        A("s_branch L_kv_join")
        A("L_kv_r0:")
        o = acc + 48
        self.lds_spin(vfl, 16, 1, t + 4, [f"ds_read_b128 {vr(o + 4 * q, 4)}, v{vx} offset:{1024 * q}" for q in range(4)])
        for q in range(8):
            A(f"v_pk_add_f32 {vr(KV + 2 * q, 2)}, {vr(KV + 2 * q, 2)}, {vr(o + 2 * q, 2)}")
        for q in range(4):
            A(f"v_cvt_pk_bf16_f32 v{o + q}, v{KV + 2 * q}, v{KV + 2 * q + 1}")
        A(f"buffer_store_dwordx4 {vr(o, 4)}, v{V['l16']}, s[{dWS}:{dWS+3}], s{sKV} offen sc1")
        A(f"v_and_b32 v{t+3}, 1, v0")
        A(f"v_cmp_eq_u32 vcc, 1, v{t+3}")
        A(f"v_lshl_add_u32 v{t+3}, v{t+3}, 4, v{t+2}")
        for q in range(4):
            A(f"v_cndmask_b32 v{Z + q}, v{Z + q}, v{Z + 4 + q}, vcc")
        A("s_mov_b32 exec_lo, 0x00030003")
        A("s_mov_b32 exec_hi, 0x00030003")
        A(f"buffer_store_dwordx4 {vr(Z, 4)}, v{t+3}, s[{dWS}:{dWS+3}], s{sZ} offen sc1")
        A("s_mov_b64 exec, -1")
        A("L_kv_join:")
        self.stamp("kvst")
        pq = fr
        for a in range(2):
            self.phi(acc + 64 + 16 * a, lambda q: (vr(V["r"] + 2 * a, 2), " op_sel_hi:[1,0,1]"), pq + 8 * a, tmp)
        A(f"s_lshl_b32 s80, s{sPG}, 12")
        A(f"s_add_u32 s{sc['sA2']}, s{sc['sA2']}, s80")
        A(f"s_add_u32 s{sc['sA2']}, s{sc['sA2']}, {NSTEP_H * 2048}")
        A(f"s_add_u32 s{sc['sFL']}, s{sc['sFL']}, 16")
        A(f"s_lshl_b32 s80, s{sC}, 10")
        A(f"v_add_u32 v{V['st']+2}, s80, v{V['l16']}")
        A(f"v_xor_b32 v{V['st']+3}, 0x400, v{V['st']+2}")
        A(f"v_lshlrev_b32 v{V['st']}, 9, v0")
        Zb, KVb, op0, op1 = tmp, tmp + 4, tmp + 8, tmp + 12
        A(f"s_cmp_eq_u32 s{sR}, 0")
        A("s_cbranch_scc1 L_gather")
        for n in ("kvflag", "kvseen", "kvld"):
            self.stamp(n)
        self.stamped = self.stamped[:-3] if self.cfg.stamps else self.stamped
        self.lds_spin(vfl, 32, 1, t + 4, [f"ds_read_b128 {vr(op0 + 4 * q, 4)}, v{vx} offset:{1024 * q}" for q in range(2)], sleep=1)
        A("s_branch L_o")
        A("L_gather:")
        A(f"s_mov_b32 s{sTAG+1}, s{sTAG}")
        A(f"s_lshl_b32 s80, s{sPG}, 9")
        A(f"s_add_u32 s80, s80, s{sI}")
        A("s_lshl_b32 s82, s80, 2")
        A(f"s_add_u32 s82, s82, {WS_FLAG + FL_KV}")
        A(f"v_lshlrev_b32 v{t+4}, 7, v0")
        A("s_waitcnt vmcnt(0)")
        self.set_flag(dWS, 82, t + 4, 16)
        self.stamp("kvflag")
        A(f"s_lshl_b32 s{sKV}, s{sPG}, 14")
        A(f"s_add_u32 s{sKV}, s{sKV}, {WS_KVP}")
        A(f"s_lshl_b32 s{sZ}, s{sPG}, 11")
        A(f"s_add_u32 s{sZ}, s{sZ}, {WS_ZP}")
        A(f"v_and_b32 v{t+3}, 15, v0")
        A(f"v_lshl_add_u32 v{t+2}, v{t+3}, 7, v{t+2}")
        self.wait_flags(sFK, 16, sTAG)
        self.stamp("kvseen")
        Z, part = acc + 16, acc + 32
        for q in range(2):
            A(f"buffer_load_dwordx4 {vr(Z + 4 * q, 4)}, v{t+2}, s[{dWS}:{dWS+3}], s{sZ} offen offset:{16 * q} sc1")
        for p in range(16):
            A(f"buffer_load_dwordx4 {vr(part + 4 * p, 4)}, v{V['l16']}, s[{dWS}:{dWS+3}], s{sKV} offen offset:{1024 * (p % 4)} sc1")
            if p % 4 == 3 and p < 15:
                A(f"s_add_u32 s{sKV}, s{sKV}, 0x1000")
        A("s_waitcnt vmcnt(16)")
        dpp = [f"v_add_f32_dpp v{Z + e}, v{Z + e}, v{Z + e} row_ror:{sh} row_mask:0xf bank_mask:0xf" for sh in (8, 4, 2, 1) for e in range(8)]
        dpp += [f"v_cvt_pk_bf16_f32 v{Zb + q}, v{Z + 2 * q}, v{Z + 2 * q + 1}" for q in range(4)]
        prim = [f"s_waitcnt vmcnt({15 - p})\nv_mfma_f32_32x32x16_bf16 {vr(D1, 16)}, {vr(V['perm'], 4)}, {vr(part + 4 * p, 4)}, " + ("0" if p == 0 else vr(D1, 16)) for p in range(16)]
        for x in interleave(prim, (dpp, 0, 8)):
            A(x)
        self.stamp("kvld")
        for q in range(4):
            A(f"v_cvt_pk_bf16_f32 v{KVb + q}, v{D1 + 2 * q}, v{D1 + 2 * q + 1}")
        for q in range(4):
            A(f"v_cndmask_b32 v{op0 + q}, v{KVb + q}, v{Zb + q}, {hi}")
        for q in range(4):
            A(f"v_cndmask_b32 v{op1 + q}, v{Zb + q}, v{KVb + q}, {hi}")
        for q in range(2):
            A(f"ds_write_b128 v{vx}, {vr(op0 + 4 * q, 4)} offset:{1024 * q}")
        A(f"ds_write_b32 v{vfl}, v{V['one']} offset:32")
        A("L_o:")
        for a in range(2):
            for s in range(2):
                d = acc + 16 * (2 * a + s)
                A(f"v_mfma_f32_32x32x16_bf16 {vr(d, 16)}, {vr(op0 + 4 * s, 4)}, {vr(pq + 8 * a + 4 * s, 4)}, 0")
        ob = fr + 16
        for a in range(2):
            for s in range(2):
                d = acc + 16 * (2 * a + s)
                num, den = (d, d + 8) if s == 0 else (d + 8, d)
                A(f"v_add_f32 v{den}, s{sc['sEPS']}, v{den}")
                A(f"v_rcp_f32 v{den}, v{den}")
                for q in range(4):
                    A(f"v_pk_mul_f32 {vr(num + 2 * q, 2)}, {vr(num + 2 * q, 2)}, {vr(den, 2)} op_sel_hi:[1,0]")
                p = ob + 4 * (2 * a + s)
                for q in range(4):
                    A(f"v_cvt_pk_bf16_f32 v{p + q}, v{num + 2 * q}, v{num + 2 * q + 1}")
                A(f"buffer_store_dwordx4 {vr(p, 4)}, v{V['st'] + 2 + a}, s[{dWS}:{dWS+3}], s{sc['sA2']} offen offset:{2048 * s} sc1")
        self.stamp("ost")
        A("s_waitcnt vmcnt(0)")
        self.set_flag(dWS, sc["sFL"], V["st"], 8)
        self.stamp("oflag")
        self.stamp_out("att")
        A("s_endpgm")
        self.flush_cold()

    def build(self):
        self.entry()
        self.lwave()
        self.cwave()
        self.A("L_end:")
        body = self.A.finish()
        here = os.path.dirname(os.path.abspath(__file__))
        head = open(os.path.join(here, "header.txt")).read()
        launch = f"; @launch grid=(256,1,1) block=(512,1,1) lds={LDS_BYTES}"
        extra = ""
        if self.cfg.lst:
            a = f"; @launch kernel={NAME} grid=(256,1,1) block=(512,1,1) lds={LDS_BYTES}"
            b = "; @launch kernel=e_kernel grid=(1,1,1) block=(64,1,1) lds=0"
            launch = a + "\n" + b if self.cfg.lst == 1 else (b + "\n" + a if self.cfg.lst == 2 else a)
            body += "\n.p2align 8\n.globl e_kernel\n.type e_kernel,@function\ne_kernel:\n    s_endpgm\n"
            extra = """.p2align 6
.amdhsa_kernel e_kernel
  .amdhsa_next_free_vgpr 8
  .amdhsa_next_free_sgpr 16
  .amdhsa_accum_offset 8
  .amdhsa_group_segment_fixed_size 0
  .amdhsa_kernarg_size 88
  .amdhsa_user_sgpr_count 2
  .amdhsa_user_sgpr_kernarg_segment_ptr 1
  .amdhsa_system_sgpr_workgroup_id_x 1
.end_amdhsa_kernel
"""
        return f"""{head}{launch}
.amdgcn_target "amdgcn-amd-amdhsa--gfx950"
.text
.globl {NAME}
.p2align 8
.type {NAME},@function
{NAME}:
{body}
.section .rodata,"a"
.p2align 6
.amdhsa_kernel {NAME}
  .amdhsa_next_free_vgpr 256
  .amdhsa_next_free_sgpr 102
  .amdhsa_accum_offset 256
  .amdhsa_group_segment_fixed_size 0
  .amdhsa_kernarg_size 88
  .amdhsa_user_sgpr_count 2
  .amdhsa_user_sgpr_kernarg_segment_ptr 1
  .amdhsa_system_sgpr_workgroup_id_x 1
.end_amdhsa_kernel
{extra}"""


def generate(**kw):
    cfg = Cfg()
    for k, v in kw.items():
        assert hasattr(cfg, k), k
        setattr(cfg, k, v)
    return Gen(cfg).build()


if __name__ == "__main__":
    out = sys.argv[1]
    kw = {}
    for a in sys.argv[2:]:
        k, v = a.split("=")
        kw[k] = int(v) if v.lstrip("-").isdigit() else v
    open(out, "w").write(generate(**kw))
```

```python
import sys, os
sys.path.insert(0, os.path.dirname(os.path.abspath(__file__)))
from asmlib import Asm, Alloc, vr, sr, interleave

NAME = "parallel_sum__linear_attn_block__dense_activation_squared_relu__prompt_kernel"

NSTEP_H, NSTEP = 86, 118
RT_STRIDE = 262144
WS_A2 = 0
WS_KVP = 32 * RT_STRIDE
WS_ZP = WS_KVP + 16 * 16 * 1024
WS_FLAG = WS_ZP + 16 * 16 * 128
FL_KV = 1024 * 128
WS_END = WS_FLAG + 1280 * 128
TAG_WG = 192
WS_STAMP = 16 << 20

L_X, L_W, L_REST, L_MISC = 0, 65536, 139264, 147456
L_R, L_MS, L_CS, L_FL, L_PS, L_KVX = L_MISC, L_MISC + 512, L_MISC + 1024, L_MISC + 4096, L_MISC + 5120, L_MISC + 8192
LDS_BYTES = 163840

sWAVE, sI, sG, sTYPE, sRT, sCT, sW = 3, 26, 27, 28, 29, 30, 31
pX, pWQKV, pWO, pW1, pB1, pW2, pB2, pOUT, pDBG, pWS = 4, 6, 8, 12, 14, 16, 18, 20, 22, 24
sPOLL = 64
SPIN = 200000
STAMP_NAMES = {}


class Cfg:
    rot1 = 2
    rot2 = 8
    ring_a = 3
    ring_m = 3
    thr_a = 4
    thr_m = 4
    early_a = 0
    early_m = 0
    pause_a = 0
    pause_m = 0
    arel = 0
    rota = -1
    e1_a = 6
    e1_m = 6
    e0 = 0
    map2 = 1
    touch1 = 0
    touch2 = 0
    psleep = 0
    code_pf = 2
    tlb = 0
    tskip = 2
    otouch = 0
    hpre = 3
    opre = 3
    pre7 = 4
    x7 = 3
    outfl = ''
    stamps = False
    skip = ()
    amp = None
    ampcyc = 0
    nostat = 0
    nocs = 0
    nodma = 0
    nost = 0
    nochain = 0
    nowait = 0
    lst = 0
    kdiag = 0
    sameij = 0
    notag = 0
    nopre = 0
    nolst = 0
    onetype = -1
    trace = 0
    cslow = 0
    clkdiag = 0


class VM:
    def __init__(self, A):
        self.A = A; self.ops = []

    def issue(self, text, tag=None):
        self.A(text); self.ops.append(tag)

    def count(self, tag):
        k = max(i for i, t in enumerate(self.ops) if t == tag)
        n = len(self.ops) - 1 - k
        self.ops = self.ops[k + 1:]
        return n

    def has(self, tag):
        return tag in self.ops

    def wait(self, tag, extra=""):
        if tag in self.ops:
            self.A(f"s_waitcnt vmcnt({self.count(tag)}){extra}")
        elif extra:
            self.A(f"s_waitcnt{extra}")

    def limit(self, n):
        if len(self.ops) > n:
            self.A(f"s_waitcnt vmcnt({n})")
            self.ops = self.ops[len(self.ops) - n:]


def srd(A, d, base, size):
    A(f"s_mov_b32 s{d}, s{base}")
    A(f"s_mov_b32 s{d+1}, s{base+1}")
    A(f"s_mov_b32 s{d+2}, {size}")
    A(f"s_mov_b32 s{d+3}, 0x20000")


class Gen:
    def __init__(self, cfg):
        self.cfg = cfg
        self.A = Asm()
        self.nlabel = 0
        self.vSTAMP = 255
        self.inL = False
        self.stamped = []
        self.cold = []

    def label(self, p):
        self.nlabel += 1
        return f"L_{p}_{self.nlabel}"

    def stamp(self, name, real=False):
        if self.inL and name == self.cfg.amp:
            self.A(("s_memtime" if self.cfg.ampcyc else "s_memrealtime") + " s[98:99]")
            self.A("s_waitcnt lgkmcnt(0)")
        if not self.cfg.stamps:
            return
        pool = [96, 98, 72, 74, 76, 78, 4, 6, 8, 10, 12, 14, 16, 18, 20, 22, 0, 62] if self.inL else [96, 98] + list(range(52, 64, 2)) + list(range(4, 24, 2))
        if name in self.cfg.skip:
            return
        if self.cfg.clkdiag and self.inL and name in ("go", "b2", "b6", "w2half", "w2iss", "preO", "oflag", "rbar"):
            return
        k = len(self.stamped)
        self.stamped.append((name, pool[k]))
        self.A(("s_memrealtime" if real else "s_memtime") + f" s[{pool[k]}:{pool[k]+1}]")
        if self.cfg.clkdiag and self.inL and name in ("b0", "b4", "b7", "hflag", "mfend"):
            self.stamp("real_" + name, real=True)

    def stamp_out(self, role):
        if not self.cfg.stamps:
            return
        A = self.A
        STAMP_NAMES[role] = [n for n, _ in self.stamped]
        A("s_waitcnt lgkmcnt(0)")
        A(f"v_mov_b32 v{self.vSTAMP}, " + ("v254" if self.cfg.trace and not self.inL else "0"))
        for k, (n, r) in enumerate(self.stamped if not (self.cfg.trace and not self.inL) else []):
            A(f"v_writelane_b32 v{self.vSTAMP}, s{r}, {k}")
        srd(A, 80, pWS, WS_STAMP + (1 << 20))
        A("s_lshl_b32 s100, s2, 3")
        A(f"s_add_u32 s100, s100, s{sWAVE}")
        A("s_lshl_b32 s100, s100, 8")
        A(f"s_add_u32 s100, s100, {WS_STAMP}")
        A("v_lshlrev_b32 v254, 2, v0")
        A(f"buffer_store_dword v{self.vSTAMP}, v254, s[80:83], s100 offen")

    def poll_issue(self, sOff, n):
        return f"s_load_dwordx{n} s[{sPOLL}:{sPOLL+n-1}], s[{pWS}:{pWS+1}], s{sOff} glc"

    def poll_test(self, n, sTAG):
        out = [f"s_xor_b64 s[{sPOLL+q}:{sPOLL+q+1}], s[{sPOLL+q}:{sPOLL+q+1}], s[{sTAG}:{sTAG+1}]" for q in range(0, n, 2)]
        d = n // 2
        while d >= 2:
            out += [f"s_or_b64 s[{sPOLL+q}:{sPOLL+q+1}], s[{sPOLL+q}:{sPOLL+q+1}], s[{sPOLL+q+d}:{sPOLL+q+d+1}]" for q in range(0, d, 2)]
            d //= 2
        return out

    def wait_flags(self, sOff, n, sTAG, issued=False):
        A = self.A
        lp, ok = self.label("fl"), self.label("flok")
        loop = [f"s_mov_b32 s80, {SPIN}", f"{lp}:", self.poll_issue(sOff, n), "s_sub_u32 s80, s80, 1", "s_waitcnt lgkmcnt(0)",
                f"s_cbranch_scc1 {ok}"] + self.poll_test(n, sTAG) + [f"s_cbranch_scc1 {lp}"]
        if issued:
            slow = self.label("flslow")
            A("s_waitcnt lgkmcnt(0)")
            for x in self.poll_test(n, sTAG):
                A(x)
            A(f"s_cbranch_scc1 {slow}")
            self.cold += [f"{slow}:"] + loop + [f"s_branch {ok}"]
        else:
            for x in loop:
                A(x)
        A(f"{ok}:")

    def set_flag(self, sSRD, sOff, vOff, nl):
        A, V = self.A, self.V
        A(f"s_mov_b64 exec, {(1 << nl) - 1}")
        A(f"buffer_store_dword v{V['tag']}, v{vOff}, s[{sSRD}:{sSRD+3}], s{sOff} offen sc1")
        A("s_mov_b64 exec, -1")

    def lds_flag_read(self, vAddr, off, n, vT):
        return {1: "ds_read_b32", 4: "ds_read_b128"}[n] + f" {vr(vT, n)}, v{vAddr} offset:{off}"

    def lds_flag_test(self, n, vT):
        out = []
        if n == 4:
            out += [f"v_and_b32 v{vT}, v{vT}, v{vT+1}", f"v_and_b32 v{vT+2}, v{vT+2}, v{vT+3}", f"v_and_b32 v{vT}, v{vT}, v{vT+2}"]
        return out + [f"v_readfirstlane_b32 s81, v{vT}", "s_cmp_eq_u32 s81, 0"]

    def lds_spin(self, vAddr, off, n, vT, reads, sleep=0, A=None):
        A = A or self.A
        lp, ok = self.label("ls"), self.label("lsok")
        A(f"s_mov_b32 s80, {SPIN * 4}")
        A(f"{lp}:")
        if sleep:
            A(f"s_sleep {sleep}")
        A(self.lds_flag_read(vAddr, off, n, vT))
        for x in reads:
            A(x)
        A("s_sub_u32 s80, s80, 1")
        A(f"s_cbranch_scc1 {ok}")
        A(f"s_waitcnt lgkmcnt({min(len(reads), 15)})")
        for x in self.lds_flag_test(n, vT):
            A(x)
        A("s_waitcnt lgkmcnt(0)")
        A(f"s_cbranch_scc1 {lp}")
        A(f"{ok}:")
        A("s_waitcnt lgkmcnt(0)")

    def flush_cold(self):
        for x in self.cold:
            self.A(x)
        self.cold = []

    def entry(self):
        A = self.A
        A("s_cmp_ge_u32 s2, 256")
        A("s_cbranch_scc0 L_go")
        A("s_endpgm")
        A("L_go:")
        if self.cfg.amp:
            A(("s_memtime" if self.cfg.ampcyc else "s_memrealtime") + " s[96:97]")
        self.stamp("real0", real=True)
        self.stamp("entry")
        A("s_load_dwordx16 s[4:19], s[0:1], 0")
        A("s_load_dwordx4 s[20:23], s[0:1], 64")
        A("s_load_dwordx2 s[24:25], s[0:1], 80")
        if self.cfg.code_pf == 2:
            A("s_getpc_b64 s[80:81]")
            A("L_pc:")
            A("s_lshr_b32 s82, s2, 3")
            A("v_lshlrev_b32 v2, 7, v0")
            A("v_lshl_add_u32 v2, s82, 7, v2")
            A(f"v_min_u32 v2, L_end-L_pc-4, v2")
            A("s_mov_b32 exec_lo, 1")
            A("s_mov_b32 exec_hi, 1")
            A("global_load_dword v253, v2, s[80:81]")
            A("s_mov_b64 exec, -1")
        A("v_lshrrev_b32 v1, 6, v0")
        A("v_and_b32 v0, 63, v0")
        A(f"v_readfirstlane_b32 s{sWAVE}, v1")
        A("s_and_b32 s80, s2, 1")
        A("s_bfe_u32 s81, s2, 0x20001")
        A("s_lshr_b32 s82, s2, 3")
        A(f"s_and_b32 s{sI}, s82, 7")
        A(f"s_lshl3_add_u32 s{sI}, s80, s{sI}")
        A(f"s_bfe_u32 s{sTYPE}, s82, 0x10003")
        A(f"s_lshr_b32 s{sG}, s82, 4")
        A(f"s_lshl1_add_u32 s{sG}, s81, s{sG}")
        if self.cfg.map2 == 0:
            A(f"s_and_b32 s{sRT}, s82, 3")
            A(f"s_lshl2_add_u32 s{sRT}, s81, s{sRT}")
            A(f"s_lshl4_add_u32 s{sRT}, s80, s{sRT}")
            A(f"s_lshr_b32 s{sCT}, s82, 2")
        else:
            A(f"s_bfe_u32 s84, s2, 0x10001")
            A(f"s_and_b32 s{sRT}, s82, 7")
            A(f"s_lshl3_add_u32 s{sRT}, s84, s{sRT}")
            A(f"s_lshl4_add_u32 s{sRT}, s80, s{sRT}")
            A(f"s_bfe_u32 s84, s2, 0x10002")
            A(f"s_lshr_b32 s{sCT}, s82, 3")
            A(f"s_lshl2_add_u32 s{sCT}, s84, s{sCT}")
        if self.cfg.sameij:
            A(f"s_mov_b32 s{sI}, 0")
            A(f"s_mov_b32 s{sG}, 0")
        if self.cfg.onetype >= 0:
            A(f"s_mov_b32 s{sTYPE}, {self.cfg.onetype}")
        A(f"s_and_b32 s{sW}, s{sWAVE}, 3")
        A(f"s_mul_i32 s83, s{sG}, 11")
        A("s_add_u32 s83, s83, 1")
        A("s_lshr_b32 s83, s83, 1")
        A("s_min_u32 s83, s83, 38")
        if self.cfg.tlb:
            A(f"s_cmp_lg_u32 s{sWAVE}, 0")
            A("s_cbranch_scc1 L_notlb")
            A("s_waitcnt lgkmcnt(0)")
            for k, ptr in enumerate((pX, pWQKV, pW1, pW2, pWO, pB1, pB2, pOUT)):
                A(f"s_load_dword s{64 + k}, s[{ptr}:{ptr+1}], 0")
            for k in range(5):
                A(f"s_mov_b32 s79, {k * (2 << 20) + (RT_STRIDE - 128 if k < 4 else (1 << 20))}")
                A(f"s_load_dword s{72 + k}, s[{pWS}:{pWS+1}], s79")
            A("L_notlb:")
        A(f"s_cmp_ge_u32 s{sWAVE}, 4")
        A("s_cbranch_scc0 L_C")

    def lwave(self):
        A, cfg = self.A, self.cfg
        self.inL = True
        vm = VM(A)
        if cfg.code_pf == 2:
            vm.ops.append("code")
        dX, dW, dW2, dWO, dAH, dAO, dOUT, dB2, dDBG = 32, 36, 40, 44, 48, 52, 56, 60, 68
        sSTR, sXB, sLX, sLW, sKX, sKW, sKS, sT, sS2, sSA, sFH, sFO, sEND, sO0 = 84, 85, 86, 87, 88, 89, 90, 91, 92, 93, 94, 95, 83, 27
        sTAG = 60
        sMASK = 26
        al = Alloc(1, 253)
        acc = al(64, 4)
        NREG = 12
        breg = al(8 * NREG, 4)
        bwork = al(16, 4)
        aring = al(8 * max(cfg.ring_a + 1, cfg.ring_m + 1, 3), 4)
        vtr = al(8)
        vW2a, vW2b, vA0, vA1, vO, vP, vD = [al() for _ in range(7)]
        vX = [aring + k for k in range(4)]
        vW = [aring + 4 + k for k in range(6)]
        t0, t1, t2, t3 = [aring + 10 + k for k in range(4)]
        vrow, vgsw = aring + 14, aring + 15

        A(f"v_lshrrev_b32 v{vrow}, 3, v0")
        A(f"v_and_b32 v{t0}, 7, v0")
        A(f"v_lshrrev_b32 v{t1}, 4, v0")
        A(f"v_xor_b32 v{t2}, v{t0}, v{t1}")
        A(f"v_lshlrev_b32 v{t2}, 4, v{t2}")
        A(f"v_lshl_add_u32 v{vX[0]}, v{vrow}, 10, v{t2}")
        A(f"v_xor_b32 v{vX[1]}, 0x2040, v{vX[0]}")
        A(f"v_add_u32 v{vX[2]}, 0x4000, v{vX[0]}")
        A(f"v_add_u32 v{vX[3]}, 0x4000, v{vX[1]}")
        A(f"v_and_b32 v{t1}, 1, v{t1}")
        A(f"v_lshlrev_b32 v{t1}, 2, v{t1}")
        A(f"v_xor_b32 v{t1}, v{t0}, v{t1}")
        A(f"v_lshlrev_b32 v{vgsw}, 4, v{t1}")
        A(f"s_lshl_b32 s80, s{sG}, 7")
        A("s_lshl_b32 s81, s83, 6")
        A(f"s_movk_i32 s{sSTR}, 2752")
        A("s_movk_i32 s82, 0x80")
        A(f"s_cmp_eq_u32 s{sTYPE}, 0")
        A(f"s_cmovk_i32 s{sSTR}, 3072")
        A("s_cselect_b32 s80, s80, s81")
        A("s_cselect_b32 s81, 0x400, 0")
        A("s_cmovk_i32 s82, 0x800")
        A(f"s_cselect_b32 s{sT}, 0, 0x100")
        A("s_add_u32 s81, s81, s80")
        A("s_add_u32 s82, s82, s80")
        A(f"s_add_u32 s80, s{sT}, s80")
        A(f"s_lshl_b32 s{sT}, s{sW}, 4")
        A(f"v_add_u32 v{t0}, s{sT}, v{vrow}")
        A(f"v_mul_u32_u24 v{t0}, s{sSTR}, v{t0}")
        A(f"v_add_u32 v{t0}, v{t0}, v{vgsw}")
        A(f"v_add_u32 v{vW[0]}, s81, v{t0}")
        A(f"v_add_u32 v{vW[1]}, s82, v{t0}")
        A(f"v_add_u32 v{vW[2]}, s80, v{t0}")
        A(f"s_bitcmp1_b32 0xea, s{sG}")
        A(f"s_cselect_b32 s80, s{sTYPE}, 0")
        A("s_lshl_b32 s80, s80, 6")
        A(f"v_and_b32 v{t1}, s80, v{vgsw}")
        A(f"v_lshl_add_u32 v{vW[2]}, v{t1}, 24, v{vW[2]}")
        A(f"s_lshl_b32 s{sT}, s{sSTR}, 3")
        for u in range(3):
            A(f"v_add_u32 v{vW[3+u]}, s{sT}, v{vW[u]}")
        A(f"s_lshl2_add_u32 s{sXB}, s{sI}, s{sW}")
        A(f"s_lshl_b32 s{sXB}, s{sXB}, 15")
        A(f"s_lshl_b32 s{sLX}, s{sW}, 12")
        A(f"s_mul_i32 s{sLW}, s{sW}, 6144")
        A(f"s_add_u32 s{sLW}, s{sLW}, {L_W}")
        A(f"s_lshl_b32 s{sSTR}, s{sSTR}, 6")
        if cfg.rot1 > 1:
            A(f"s_lshl1_add_u32 s80, s{sG}, s{sTYPE}")
            if cfg.rot1 == 8:
                A("s_lshl_b32 s80, s80, 1")
            A(f"s_add_u32 s80, s80, s{sI}")
            A(f"s_and_b32 s80, s80, {cfg.rot1 - 1}")
            A(f"s_mul_i32 s{sKS}, s80, {8 // cfg.rot1}")
        else:
            A(f"s_mov_b32 s{sKS}, 0")
        A(f"s_mov_b32 s{dX+2}, 2097152")
        A(f"s_mov_b32 s{dX+3}, 0x20000")
        A(f"s_mov_b32 s{dW+2}, 1409024")
        A(f"s_mov_b32 s{dW+3}, 0x20000")
        A(f"s_cmp_eq_u32 s{sTYPE}, 0")
        A(f"s_cmov_b32 s{dW+2}, 1572864")
        A("s_waitcnt lgkmcnt(0)")
        A(f"s_mov_b64 s[{dX}:{dX+1}], s[{pX}:{pX+1}]")
        A(f"s_cselect_b64 s[{dW}:{dW+1}], s[{pWQKV}:{pWQKV+1}], s[{pW1}:{pW1+1}]")
        self.stamp("go")

        def stage(s):
            slot = s % 3
            A(f"s_lshl_b32 s{sKX}, s{sKS}, 7")
            A(f"s_add_u32 s{sKX}, s{sKX}, s{sXB}")
            A(f"s_mul_i32 s{sKW}, s{sKS}, s{sSTR}")
            A(f"s_add_u32 s{sKS}, s{sKS}, 1")
            A(f"s_and_b32 s{sKS}, s{sKS}, 7")
            if cfg.nodma and s >= cfg.nodma - 1:
                return
            for n in range(4 if s < 7 else 0):
                A(f"s_add_u32 m0, s{sLX}, {slot * 16384 + n * 1024}")
                vm.issue(f"buffer_load_dwordx4 v{vX[n]}, s[{dX}:{dX+3}], s{sKX} offen lds", f"st{s}")
            for rg in range(2):
                for u in range(3):
                    A(f"s_add_u32 m0, s{sLW}, {slot * 24576 + u * 2048 + rg * 1024}")
                    vm.issue(f"buffer_load_dwordx4 v{vW[3*rg+u]}, s[{dW}:{dW+3}], s{sKW} offen lds", f"st{s}")

            if s == cfg.x7:
                A(f"s_add_u32 s{sKX}, s{sKS}, {6 - s}")
                A(f"s_and_b32 s{sKX}, s{sKX}, 7")
                A(f"s_lshl_b32 s{sKX}, s{sKX}, 7")
                A(f"s_add_u32 s{sKX}, s{sKX}, s{sXB}")
                for n in range(4):
                    A(f"s_add_u32 m0, s{sLX}, {3 * 16384 + n * 1024}")
                    vm.issue(f"buffer_load_dwordx4 v{vX[n]}, s[{dX}:{dX+3}], s{sKX} offen lds", "x7")

        ntouch = [0]

        def touch(items):
            A(f"s_lshl2_add_u32 s80, s2, s{sW}")
            for ptr, size in items:
                lo = size * cfg.tskip // 8 if ptr in (pWQKV, pW1) else 0
                n = -(-(size - lo) // (128 * 1024))
                mask = (1 << n) - 1
                if ptr == pX:
                    mask &= ~(((1 << cfg.tskip) - 1) * 0x101)
                k = ntouch[0]; ntouch[0] += 1
                A(f"s_mul_i32 s81, s80, {n * 128}")
                if lo:
                    A(f"s_add_u32 s81, s81, {lo}")
                A(f"v_lshl_add_u32 v{acc + 2 * k}, v0, 7, s81")
                A(f"v_min_u32 v{acc + 2 * k}, {size - 4}, v{acc + 2 * k}")
                A(f"s_mov_b64 exec, {mask}")
                vm.issue(f"global_load_dword v{acc + 2 * k + 1}, v{acc + 2 * k}, s[{ptr}:{ptr+1}]", "touch")
                A("s_mov_b64 exec, -1")
        T1 = [(pWQKV, 1572864), (pW1, 1409024), (pX, 2097152)]
        T2 = [(pW2, 1409024), (pWO, 524288)]

        if cfg.touch1 == 2:
            touch(T1 + (T2 if cfg.touch2 == 1 else []))
        stage(0)
        if cfg.touch1 != 2:
            touch((T1 if cfg.touch1 == 1 else []) + (T2 if cfg.touch2 == 1 else []))
        stage(1)
        srd(A, dW2, pW2, 1409024)
        srd(A, dWO, pWO, 524288)
        A(f"s_mul_i32 s80, s{sRT}, {RT_STRIDE}")
        A(f"s_add_u32 s{dAH}, s{pWS}, s80")
        A(f"s_addc_u32 s{dAH+1}, s{pWS+1}, 0")
        A(f"s_mov_b32 s{dAH+2}, {NSTEP_H * 2048}")
        A(f"s_mov_b32 s{dAH+3}, 0x20000")
        A(f"s_add_u32 s{dAO}, s{dAH}, {NSTEP_H * 2048}")
        A(f"s_addc_u32 s{dAO+1}, s{dAH+1}, 0")
        A(f"s_mov_b32 s{dAO+2}, {32 * 2048}")
        A(f"s_mov_b32 s{dAO+3}, 0x20000")
        srd(A, dOUT, pOUT, 2097152)
        srd(A, dB2, pB2, 1024)
        srd(A, dDBG, pDBG, 256)
        A(f"s_lshl3_add_u32 s{sFH}, s{sRT}, s{sCT}")
        A(f"s_lshl2_add_u32 s{sFH}, s{sFH}, s{sW}")
        A(f"s_lshl_b32 s{sFH}, s{sFH}, 7")
        A(f"s_add_u32 s{sFH}, s{sFH}, {WS_FLAG}")
        A(f"s_add_u32 s{sFO}, s{sFH}, 16")
        if not cfg.nopre:
            A(f"s_load_dword s{sPOLL}, s[{pWS}:{pWS+1}], s{sFH} glc")
        A(f"s_lshl_b32 s80, s{sCT}, 7")
        A(f"v_lshl_add_u32 v{vW2a}, v{vrow}, 10, v{vgsw}")
        A(f"v_add_u32 v{vW2a}, s80, v{vW2a}")
        A(f"v_add_u32 v{vW2b}, {8192 - 1024}, v{vW2a}")
        A(f"v_lshrrev_b32 v{t0}, 5, v0")
        A(f"v_bfe_u32 v{t1}, v0, 2, 2")
        A(f"v_lshlrev_b32 v{t2}, 9, v{t0}")
        A(f"v_lshl_add_u32 v{t2}, v{t1}, 7, v{t2}")
        A(f"v_lshrrev_b32 v{t1}, 1, v{t1}")
        A(f"s_and_b32 s80, s{sW}, 1")
        A(f"v_xor_b32 v{t1}, s80, v{t1}")
        A(f"v_lshl_add_u32 v{t2}, v{t1}, 6, v{t2}")
        A(f"v_bfe_u32 v{t1}, v0, 4, 1")
        A(f"v_lshl_add_u32 v{t2}, v{t1}, 5, v{t2}")
        A(f"v_and_b32 v{t1}, 3, v0")
        A(f"v_lshl_add_u32 v{t2}, v{t1}, 3, v{t2}")
        A(f"v_xor_b32 v{t3}, 64, v{t2}")
        A(f"v_add_u32 v{vtr+0}, s{sLX}, v{t2}")
        A(f"v_add_u32 v{vtr+1}, s{sLX}, v{t3}")
        A(f"v_add_u32 v{vtr+2}, s{sLW}, v{t2}")
        A(f"v_add_u32 v{vtr+3}, s{sLW}, v{t3}")
        A(f"v_add_u32 v{vtr+4}, 49152, v{vtr+2}")
        A(f"v_add_u32 v{vtr+5}, 49152, v{vtr+3}")
        A(f"s_lshl_b32 s{sSA}, s{sW}, 11")
        A(f"s_add_u32 s{sSA}, s{sSA}, {L_REST}")
        A(f"v_add_u32 v{vtr+6}, s{sSA}, v{t2}")
        A(f"v_add_u32 v{vtr+7}, s{sSA}, v{t3}")
        A(f"s_lshr_b32 s81, s{sW}, 1")
        A("s_lshl_b32 s82, s81, 10")
        A(f"v_lshl_add_u32 v{vA0}, v0, 4, s82")
        A(f"v_xor_b32 v{vA1}, 0x400, v{vA0}")
        A(f"s_lshl1_add_u32 s81, s{sRT}, s81")
        A("s_lshl_b32 s81, s81, 15")
        A(f"s_lshl1_add_u32 s80, s{sCT}, s80")
        A(f"s_lshl_b32 s{sT}, s80, 6")
        A(f"v_lshl_add_u32 v{t2}, v{t0}, 4, s{sT}")
        A(f"v_and_b32 v{t1}, 31, v0")
        A(f"v_lshl_add_u32 v{vO}, v{t1}, 10, s81")
        A(f"v_add_u32 v{vO}, v{vO}, v{t2}")
        A(f"v_mov_b32 v{vD}, {L_FL}")
        xs, xa, lst, lt = acc + 32, acc + 48, acc + 52, acc + 56
        vPS = acc + 60
        A(f"v_bfe_u32 v{t3}, v0, 1, 3")
        A(f"v_xor_b32 v{t3}, v{t3}, v{t0}")
        A(f"v_lshl_add_u32 v{t3}, v{t3}, 4, s{sLX}")
        A(f"v_lshl_add_u32 v{xa}, v{t1}, 7, v{t3}")
        for p in range(1, 4):
            A(f"v_xor_b32 v{xa + p}, {32 * p}, v{xa}")
        for q in range(4):
            A(f"v_mov_b32 v{lst + q}, 0")
        A(f"s_lshl_b32 s80, s{sW}, 9")
        A(f"s_add_u32 s80, s80, {L_PS}")
        A(f"v_lshl_add_u32 v{vPS}, v0, 3, s80")
        A(f"s_mov_b32 s{sMASK}, 0xffff0000")

        def stat_valu():
            va = []
            for q in range(16):
                a, b = lt + 2 * (q % 2), lt + 2 * (q % 2) + 1
                va.append(f"v_lshlrev_b32 v{a}, 16, v{xs + q}\nv_and_b32 v{b}, s{sMASK}, v{xs + q}\n"
                          f"v_add_f32 v{lst}, v{lst}, v{a}\nv_add_f32 v{lst+1}, v{lst+1}, v{b}\n"
                          f"v_fmac_f32 v{lst+2}, v{a}, v{a}\nv_fmac_f32 v{lst+3}, v{b}, v{b}")
            return va
        A(f"s_mul_i32 s81, s{sW}, 22")
        if cfg.rot2 > 1:
            if cfg.rota >= 0:
                A(f"s_bfe_u32 s82, s{sCT}, {0x10000 + cfg.rota}")
                A(f"s_mul_i32 s82, s82, {cfg.rot2 // 2}")
                A(f"s_add_u32 s82, s82, s{sRT}")
                A(f"s_and_b32 s82, s82, {cfg.rot2 - 1}")
            else:
                A(f"s_and_b32 s82, s{sRT}, {cfg.rot2 - 1}")
            A("s_mul_i32 s80, s82, 22")
            A(f"s_lshr_b32 s80, s80, {cfg.rot2.bit_length() - 1}")
            A("s_add_u32 s80, s80, s81")
            A(f"s_add_u32 s{sEND}, s81, 22")
            A(f"s_mul_i32 s{sO0}, s82, {8 // cfg.rot2}")
        else:
            A("s_mov_b32 s80, s81")
            A(f"s_mov_b32 s{sO0}, 0")
        A(f"s_mov_b32 s{sS2}, s80")

        def lbody(attn):
            sfx = "_a" if attn else "_m"
            R, thr, early, pause = (cfg.ring_a, cfg.thr_a, cfg.early_a, cfg.pause_a) if attn else (cfg.ring_m, cfg.thr_m, cfg.early_m, cfg.pause_m)
            def slots_of(kx, kw):
                return [("X", kx, 0), ("X", kx, 1), ("W", kw, 0), ("W", kw, 1), ("W", kw, 2)]
            free = [("R", 0, 0), ("R", 1, 0)]
            where = {}

            def lds_imm(sl):
                reg, k, idx = sl
                return k * 24576 + idx * 2048 if reg == "W" else k * 16384 + idx * 2048

            def kstep(n, sDst, shift):
                if n >= 22:
                    return [f"s_add_u32 s{sDst}, s{sO0}, {n - 22}", f"s_and_b32 s{sDst}, s{sDst}, 7",
                            f"s_lshl3_add_u32 s{sDst}, s{sW}, s{sDst}", f"s_lshl_b32 s{sDst}, s{sDst}, {shift}"]
                out = [f"s_add_u32 s{sDst}, s{sS2}, {n}"]
                if cfg.rot2 > 1:
                    out += [f"s_cmp_ge_u32 s{sDst}, s{sEND}", "s_cselect_b32 s80, 22, 0", f"s_sub_u32 s{sDst}, s{sDst}, s80"]
                return out + [f"s_lshl_b32 s{sDst}, s{sDst}, {shift}"]

            def issue_w2(n):
                sl = free.pop(0)
                where[n] = sl
                base = {"X": sLX, "W": sLW, "R": sSA}[sl[0]]
                d = dW2 if n < 22 else dWO
                A(f"s_add_u32 m0, s{base}, {lds_imm(sl)}")
                for x in kstep(n, 82, 14):
                    A(x)
                vm.issue(f"buffer_load_dwordx4 v{vW2a}, s[{d}:{d+3}], s82 offen lds", f"w{n}")
                vm.issue(f"buffer_load_dwordx4 v{vW2b}, s[{d}:{d+3}], s82 offen offset:1024 lds", f"w{n}")

            def tr_reads(n, dst):
                reg, k, idx = where[n]
                if reg == "R":
                    a, imm = vtr + 6, lds_imm(where[n])
                elif reg == "X":
                    a, imm = vtr, lds_imm(where[n])
                elif k < 2:
                    a, imm = vtr + 2, lds_imm(where[n])
                else:
                    a, imm = vtr + 4, lds_imm(where[n]) - 49152
                return [f"ds_read_b64_tr_b16 {vr(dst + 4 * nt + 2 * j, 2)}, v{a + nt} offset:{imm + 1024 * j}"
                        for nt in range(2) for j in range(2)]

            R0 = 22 - R - cfg.opre - 1
            inreg = lambda n: R0 <= n < R0 + NREG
            no = 8 // cfg.rot2 if cfg.rot2 > 1 else 0
            nh = -(-22 // cfg.rot2) if cfg.rot2 > 1 else 0
            first = list(range(R0, R0 + nh)) + list(range(22, 22 + no))
            order = first + [n for n in range(30) if inreg(n) and n not in first]
            order += [n for n in range(30) if n not in order]
            breg_of = {}
            for n in order:
                if inreg(n):
                    breg_of[n] = breg + 8 * len(breg_of)
            pending = []
            state = {"k": 0, "done": 0}

            def take_early():
                if state["done"] < state["k"]:
                    vm.wait(f"w{order[state['k'] - 1]}")
                    for n in order[state["done"]:state["k"]]:
                        assert inreg(n)
                        for x in tr_reads(n, breg_of[n]):
                            A(x)
                        free.append(where[n])
                    state["done"] = state["k"]
                    A("s_waitcnt lgkmcnt(0)")

            xr, br = acc + 16, acc + 24
            for s in range(6):
                vm.wait(f"st{s}")
                A("s_barrier")
                if s in (0, 2, 4):
                    self.stamp(f"b{s}")
                if cfg.touch2 == s + 2:
                    touch(T2)
                take_early()
                e1 = cfg.e1_a if attn else cfg.e1_m
                if cfg.e0 <= s < e1:
                    for _ in range(-(-early * (s - cfg.e0 + 1) // (e1 - cfg.e0)) - state["k"]):
                        issue_w2(order[state["k"]]); state["k"] += 1
                if s == 0:
                    for j in range(2):
                        vm.issue(f"buffer_load_dwordx4 {vr(br + 4 * j, 4)}, v{t2}, s[{dB2}:{dB2+3}], 0 offen offset:{32 * j}", "xb")
                if s == 4 and not cfg.notag:
                    A("s_mov_b64 exec, 1")
                    vm.issue(f"buffer_load_dword v{vP}, off, s[{dDBG}:{dDBG+3}], 0 sc1", "tag")
                    A("s_mov_b64 exec, -1")
                stage(s + 2)
                if s == cfg.x7:
                    vm.wait("x7")
                    for p in range(4):
                        A(f"ds_read_b128 {vr(xs + 4 * p, 4)}, v{xa + p} offset:{3 * 16384}")
                    A("s_waitcnt lgkmcnt(0)")
                if s == 5 and not cfg.notag:
                    vm.wait("tag")
                    A(f"v_readfirstlane_b32 s{sTAG}, v{vP}")
                    A(f"s_cmp_eq_u32 s{sTAG}, 0")
                    A(f"s_cbranch_scc1 L_tag_wait{sfx}")
                    A(f"L_tag_ok{sfx}:")
                    self.cold += [f"L_tag_wait{sfx}:", f"s_mov_b32 s80, {SPIN}", "s_mov_b64 exec, 1", f"L_tag_lp{sfx}:",
                                  f"buffer_load_dword v{vP}, off, s[{dDBG}:{dDBG+3}], 0 sc1",
                                  "s_waitcnt vmcnt(0)", f"v_readfirstlane_b32 s{sTAG}, v{vP}", "s_sub_u32 s80, s80, 1", f"s_cbranch_scc1 L_tag_out{sfx}",
                                  f"s_cmp_eq_u32 s{sTAG}, 0", f"s_cbranch_scc1 L_tag_lp{sfx}", f"L_tag_out{sfx}:", "s_mov_b64 exec, -1", f"s_branch L_tag_ok{sfx}"]
                    A(f"s_mov_b32 s{sTAG+1}, s{sTAG}")
                    A(f"v_mov_b32 v{vP}, s{sTAG}")
                    A(f"ds_write_b32 v{vD}, v{vP} offset:256")
                if s >= cfg.x7 and not cfg.nolst:
                    nst = 6 - cfg.x7
                    for x in stat_valu()[16 * (s - cfg.x7) // nst:16 * (s - cfg.x7 + 1) // nst]:
                        A(x)
            A(f"v_add_f32 v{lst}, v{lst}, v{lst+1}")
            A(f"v_add_f32 v{lst+1}, v{lst+2}, v{lst+3}")
            A(f"ds_write_b64 v{vPS}, {vr(lst, 2)}")
            vm.wait("st6", " lgkmcnt(0)")
            A("s_barrier")
            self.stamp("b6")

            take_early()
            if attn:
                free.remove(("R", 1, 0))
            free.extend([("X", 1, 0), ("X", 1, 1)] + slots_of(2, 2))
            k0 = state["k"]
            for n in order[k0:k0 + cfg.pre7]:
                issue_w2(n)
            vm.wait("st7")
            A("s_barrier")
            self.stamp("b7")
            free.extend(slots_of(0, 0))
            done = state["done"]
            for k in range(k0 + cfg.pre7, 30):
                if pending:
                    A("s_waitcnt lgkmcnt(0)")
                    free.extend(pending); pending = []
                if pause and k == k0 + cfg.pre7 + pause - 1:
                    self.stamp("pause")
                    self.lds_spin(vD, 48, 4, bwork, [], sleep=2)
                    self.stamp("resume")
                    free.extend(slots_of(3, 1))
                if not free:
                    assert ("X", 3, 0) not in where.values() and not pause
                    self.lds_spin(vD, 0, 4, bwork, [], sleep=1)
                    free.extend(slots_of(3, 1))
                if k == 30 - cfg.hpre and not cfg.nowait:
                    A(self.poll_issue(sFH, 4))
                issue_w2(order[k])
                if k == max(8, k0 + cfg.pre7):
                    for j in range(2):
                        vm.issue(f"buffer_load_dwordx4 {vr(xr + 4 * j, 4)}, v{vO}, s[{dX}:{dX+3}], 0 offen offset:{32 * j}", "xb")
                    if cfg.otouch:
                        vm.issue(f"buffer_load_dword v{vP}, v{vO}, s[{dOUT}:{dOUT+3}], 0 offen", "xb")
                vm.limit(thr)
                while done <= k and not vm.has(f"w{order[done]}") and len(pending) < 3:
                    n = order[done]; done += 1
                    if inreg(n):
                        for x in tr_reads(n, breg_of[n]):
                            A(x)
                        pending.append(where[n])
                if k == 25:
                    vm.wait("xb")
                    for j in range(2):
                        for base in (xr, br):
                            A(f"v_permlane32_swap_b32 v{base + 4 * j}, v{base + 4 * j + 2}")
                            A(f"v_permlane32_swap_b32 v{base + 4 * j + 1}, v{base + 4 * j + 3}")
                    for q in range(8):
                        A(f"v_lshlrev_b32 v{acc + 2 * q}, 16, v{xr + q}")
                        A(f"v_and_b32 v{acc + 2 * q + 1}, s{sMASK}, v{xr + q}")
                        A(f"v_lshlrev_b32 v{acc + 32 + 2 * q}, 16, v{br + q}")
                        A(f"v_and_b32 v{acc + 33 + 2 * q}, s{sMASK}, v{br + q}")
                    for q in range(16):
                        A(f"v_add_f32 v{acc + q}, v{acc + q}, v{acc + 32 + q}")
            assert not pending and done > max(k for k, n in enumerate(order) if inreg(n))
            assert not vm.has("w0")
            for x in tr_reads(0, bwork):
                A(x)
            self.stamp("w2iss")
            if not cfg.nowait:
                self.wait_flags(sFH, 4, sTAG, issued=cfg.hpre > 0)
            self.stamp("hflag")

            def a_loads(n):
                b = aring + 8 * (n % (R + 1))
                d = dAH if n < 22 else dAO
                for x in kstep(n, 81, 11):
                    A(x)
                vm.issue(f"buffer_load_dwordx4 {vr(b, 4)}, v{vA0}, s[{d}:{d+3}], s81 offen sc1", f"a{n}")
                vm.issue(f"buffer_load_dwordx4 {vr(b + 4, 4)}, v{vA1}, s[{d}:{d+3}], s81 offen sc1", f"a{n}")

            for n in range(R):
                a_loads(n)
            for n in range(30):
                nxt = n + R
                owait = not (cfg.nowait or cfg.nochain)
                if nxt == 22 - cfg.opre and cfg.opre and owait:
                    A(self.poll_issue(sFO, 4))
                if nxt == 22:
                    self.stamp("preO")
                    if owait:
                        self.wait_flags(sFO, 4, sTAG, issued=cfg.opre > 0)
                    self.stamp("oflag")
                if nxt < 30:
                    a_loads(nxt)
                bsrc = breg_of[n] if inreg(n) else bwork + 8 * (n % 2)
                vm.wait(f"a{n}", "" if inreg(n) else " lgkmcnt(0)")
                b = aring + 8 * (n % (R + 1))
                mf = []
                for blk in ((1, 2, 3, 0) if n == 29 else (0, 1, 2, 3)):
                    nt, tt = blk & 1, blk >> 1
                    d = acc + 16 * blk
                    c = "0" if (n == 0 and blk) else vr(d, 16)
                    mf.append(f"v_mfma_f32_32x32x16_bf16 {vr(d, 16)}, {vr(bsrc + 4 * nt, 4)}, {vr(b + 4 * tt, 4)}, {c}")
                if n + 1 < 30 and not inreg(n + 1):
                    mf = interleave(mf, (tr_reads(n + 1, bwork + 8 * ((n + 1) % 2)), 0, 1))
                for x in mf:
                    A(x)
            self.stamp("mfend")
            vr0 = vtr
            A(f"v_lshl_add_u32 v{vr0}, v0, 4, s{sLX}")
            for blk in range(1, 4):
                for q in range(4):
                    A(f"ds_write_b128 v{vr0}, {vr(acc + 16 * blk + 4 * q, 4)} offset:{(blk - 1) * 16384 + q * 1024}")
            for blk in range(1, 4):
                A(f"v_xor_b32 v{vtr + blk}, {blk << 12}, v{vr0}")
            A("s_waitcnt lgkmcnt(0)")
            A("s_barrier")
            self.stamp("rbar")
            for q in range(4):
                for blk in range(1, 4):
                    A(f"ds_read_b128 {vr(breg + 16 * blk + 4 * q, 4)}, v{vtr + blk} offset:{(blk - 1) * 16384 + q * 1024}")
            pk = breg
            for q in range(4):
                A(f"s_waitcnt lgkmcnt({9 - 3 * q})")
                for blk in range(1, 4):
                    for d in range(2):
                        a = acc + 4 * q + 2 * d
                        A(f"v_pk_add_f32 {vr(a, 2)}, {vr(a, 2)}, {vr(breg + 16 * blk + 4 * q + 2 * d, 2)}")
                for d in range(2):
                    A(f"v_cvt_pk_bf16_f32 v{pk + 2 * q + d}, v{acc + 4 * q + 2 * d}, v{acc + 4 * q + 2 * d + 1}")
                if q % 2 == 1:
                    p = pk + 2 * (q - 1)
                    A(f"v_permlane32_swap_b32 v{p}, v{p + 2}")
                    A(f"v_permlane32_swap_b32 v{p + 1}, v{p + 3}")
                    A(f"buffer_store_dwordx4 {vr(p, 4)}, v{vO}, s[{dOUT}:{dOUT+3}], 0 offen offset:{16 * (q - 1)} {cfg.outfl.replace('_', ' ')}")
            if cfg.stamps or cfg.amp:
                A("s_waitcnt vmcnt(0)")
                self.stamp("end")
                self.stamp("real1", real=True)
                self.stamp_out("La" if attn else "Lm")
            if cfg.amp:
                A("s_sub_u32 s98, s98, s96")
                A("s_lshr_b32 s98, s98, 1" if cfg.ampcyc else "s_mul_i32 s98, s98, 10")
                A("s_min_u32 s98, s98, 200000")
                A("s_memrealtime s[96:97]")
                A(f"L_amp{sfx}:")
                A("s_memrealtime s[100:101]")
                A("s_waitcnt lgkmcnt(0)")
                A("s_sub_u32 s100, s100, s96")
                A("s_cmp_lt_u32 s100, s98")
                A(f"s_cbranch_scc1 L_amp{sfx}")
            A("s_endpgm")
            self.flush_cold()

        ops0, st0, nt0 = list(vm.ops), list(self.stamped), ntouch[0]
        A(f"s_cmp_eq_u32 s{sTYPE}, 0")
        A("s_cbranch_scc1 L_L_attn")
        lbody(False)
        vm.ops, self.stamped, ntouch[0] = ops0, st0, nt0
        A("L_L_attn:")
        lbody(True)
        self.inL = False
        self.stamped = self.stamped[:2]

    def cwave(self):
        A, cfg = self.A, self.cfg
        dWS, dB1, dDBG = 32, 36, 40
        self.dWS = dWS
        sR, sC, sMASK, sEPS, sL2E, sA2, sFL, sPERM, sHI = 84, 85, 86, 88, 90, 92, 93, 94, 44
        self.sc = dict(sR=sR, sC=sC, sMASK=sMASK, sEPS=sEPS, sL2E=sL2E, sA2=sA2, sFL=sFL, sPERM=sPERM, sHI=sHI)
        al = Alloc(1, 253)
        V = self.V = {}
        V["acc"] = al(96, 4)
        V["fr"] = al(40, 4)
        V["cs"] = al(12, 4)
        V["sel"] = al(4, 4)
        V["aug"] = al(20, 4)
        V["perm"] = al(4, 4)
        V["ones"] = al(4, 4)
        V["rT"] = al(32, 4)
        V["xa"] = al(8)
        V["wa"] = al(4)
        V["st"] = al(4)
        V["t"] = al(8, 4)
        V["r"] = al(4, 2)
        V["b1"] = al(3)
        V["tok"] = al(2)
        V["l16"] = al(1)
        V["one"] = al(1)
        V["fl"] = al(1)
        V["tag"] = al(1)
        V["csa"] = 1
        t = V["t"]
        A("L_C:")
        if cfg.code_pf == 1:
            A("s_getpc_b64 s[80:81]")
            A("L_pc:")
            A(f"s_sub_u32 s80, s80, L_pc-{NAME}")
            A("s_subb_u32 s81, s81, 0")
            A("s_lshr_b32 s82, s2, 3")
            A(f"s_lshl2_add_u32 s82, s82, s{sW}")
            A(f"v_and_b32 v{t}, 3, v0")
            A(f"v_lshl_add_u32 v{t}, v{t}, 7, s82")
            A(f"v_lshlrev_b32 v{t}, 7, v{t}")
            A(f"v_min_u32 v{t}, L_end-{NAME}-4, v{t}")
            A("s_mov_b64 exec, 15")
            A(f"global_load_dword v{V['rT']}, v{t}, s[80:81]")
            A("s_mov_b64 exec, -1")
        A(f"s_lshr_b32 s{sR}, s{sW}, 1")
        A(f"s_and_b32 s{sC}, s{sW}, 1")
        A(f"s_mov_b32 s{sMASK}, 0xffff0000")
        A(f"s_mov_b32 s{sEPS}, 0x358637bd")
        A(f"s_mov_b32 s{sEPS+1}, 0x358637bd")
        A(f"s_mov_b32 s{sL2E}, 0x3fb8aa3b")
        A(f"s_mov_b32 s{sL2E+1}, 0x3fb8aa3b")
        A(f"s_mov_b32 s{sPERM}, 0x07060302")
        A(f"s_mov_b32 s{sHI}, 0xffff0000")
        A(f"s_mov_b32 s{sHI+1}, 0xffff0000")
        A(f"v_and_b32 v{t}, 31, v0")
        A(f"v_lshrrev_b32 v{t+1}, 5, v0")
        A(f"s_lshl_b32 s80, s{sW}, 5")
        A(f"v_add_u32 v{t+2}, s80, v{t}")
        A(f"v_lshlrev_b32 v{V['tok']}, 2, v{t+2}")
        A(f"v_add_u32 v{V['tok']}, {L_MISC}, v{V['tok']}")
        A(f"v_xor_b32 v{V['tok']+1}, 0x80, v{V['tok']}")
        A(f"v_bfe_u32 v{t+3}, v0, 1, 3")
        A(f"v_xor_b32 v{t+3}, v{t+3}, v{t+1}")
        A(f"s_lshl_b32 s80, s{sR}, 2")
        A(f"v_xor_b32 v{t+3}, s80, v{t+3}")
        A(f"v_lshlrev_b32 v{t+3}, 4, v{t+3}")
        A(f"v_lshl_add_u32 v{V['xa']}, v{t+2}, 7, v{t+3}")
        for p in range(1, 4):
            A(f"v_xor_b32 v{V['xa']+2*p}, {32 * p}, v{V['xa']}")
        for p in range(4):
            A(f"v_xor_b32 v{V['xa']+2*p+1}, 0x1000, v{V['xa']+2*p}")
        A(f"v_bfe_u32 v{t+2}, v0, 2, 2")
        A(f"v_lshlrev_b32 v{t+3}, 10, v{t+1}")
        A(f"v_lshl_add_u32 v{t+3}, v{t+2}, 7, v{t+3}")
        A(f"v_lshrrev_b32 v{t+2}, 1, v{t+2}")
        A(f"v_xor_b32 v{t+2}, s{sC}, v{t+2}")
        A(f"v_lshl_add_u32 v{t+3}, v{t+2}, 6, v{t+3}")
        A(f"v_bfe_u32 v{t+2}, v0, 4, 1")
        A(f"v_lshl_add_u32 v{t+3}, v{t+2}, 5, v{t+3}")
        A(f"v_and_b32 v{t+2}, 3, v0")
        A(f"v_lshl_add_u32 v{t+3}, v{t+2}, 3, v{t+3}")
        A(f"s_mul_i32 s80, s{sR}, 12288")
        A(f"s_sub_u32 s81, {L_W}, s80")
        A(f"s_add_u32 s80, s80, {L_W}")
        A(f"v_add_u32 v{V['wa']}, s80, v{t+3}")
        A(f"v_add_u32 v{V['wa']+1}, s81, v{t+3}")
        A(f"v_add_u32 v{V['wa']+2}, 49152, v{V['wa']}")
        A(f"v_add_u32 v{V['wa']+3}, 49152, v{V['wa']+1}")
        A(f"v_lshrrev_b32 v{t+2}, 4, v0")
        A(f"v_bfe_u32 v{t+3}, v0, 2, 2")
        A(f"v_mov_b32 v{V['ones']}, 0x3f803f80")
        A(f"v_cmp_eq_u32 vcc, v{t+2}, v{t+3}")
        for q in range(1, 4):
            A(f"v_mov_b32 v{V['ones']+q}, v{V['ones']}")
        for q in range(4):
            A(f"v_cndmask_b32 v{V['sel']+q}, 0, v{V['ones']}, vcc")
        for q in range(5):
            A(f"v_mov_b32 v{V['aug']+4*q+2}, 0")
            A(f"v_mov_b32 v{V['aug']+4*q+3}, 0")
        for q in range(4):
            A(f"v_mov_b32 v{V['st']+q}, 0")
        A(f"v_lshlrev_b32 v{V['l16']}, 4, v0")
        A(f"v_mov_b32 v{V['one']}, 1")
        A(f"v_mov_b32 v{V['fl']}, {L_FL}")
        A(f"s_mov_b32 s{sPERM+1}, 0x01000100")
        A(f"s_mul_i32 s80, s{sW}, 768")
        A(f"s_add_u32 s80, s80, {L_CS}")
        A("v_lshl_add_u32 v1, v0, 2, s80")
        A(f"s_xor_b32 s81, s{sW}, 2")
        A("s_mul_i32 s81, s81, 768")
        A(f"s_add_u32 s81, s81, {L_CS}")
        A("v_lshl_add_u32 v2, v0, 2, s81")
        A(f"s_lshl_b32 s80, s{sW}, 2")
        A(f"v_add_u32 v3, s80, v{V['fl']}")
        A(f"v_lshl_add_u32 v{t+2}, v0, 2, v{V['fl']}")
        A(f"ds_write_b32 v{t+2}, v{V['st']}")
        A("s_waitcnt lgkmcnt(0)")
        srd(A, dWS, pWS, WS_END)
        A(f"s_lshl1_add_u32 s80, s{sI}, s{sR}")
        A(f"s_mul_i32 s{sA2}, s80, {RT_STRIDE}")
        A(f"s_lshr_b32 s81, s{sG}, 1")
        A("s_lshl_b32 s80, s80, 5")
        A("s_add_u32 s80, s80, s81")
        A(f"s_and_b32 s81, s{sG}, 1")
        A(f"s_lshl1_add_u32 s81, s81, s{sC}")
        A("s_lshl_b32 s80, s80, 5")
        A("s_add_u32 s80, s80, s81")
        A(f"s_lshl_b32 s{sFL}, s80, 2")
        A(f"s_add_u32 s{sFL}, s{sFL}, {WS_FLAG}")
        A(f"s_lshl3_add_u32 s80, s2, s{sWAVE}")
        A(f"s_cmp_eq_u32 s80, {TAG_WG * 8 if not cfg.notag else 99999}")
        A("s_cbranch_scc1 L_tagger")
        self.cold += ["L_tagger:", f"s_load_dword s64, s[{pWS}:{pWS+1}], s{sFL} glc",
                      f"s_mov_b32 s{dDBG}, s{pDBG}", f"s_mov_b32 s{dDBG+1}, s{pDBG+1}", f"s_mov_b32 s{dDBG+2}, 256", f"s_mov_b32 s{dDBG+3}, 0x20000",
                      "s_waitcnt lgkmcnt(0)", "s_mul_i32 s64, s64, 0x9e3779b1", "s_add_u32 s64, s64, 0x7f4a7c15", "s_or_b32 s64, s64, 1",
                      f"v_mov_b32 v{t+2}, s64", "s_mov_b64 exec, 1",
                      f"buffer_store_dword v{t+2}, off, s[{dDBG}:{dDBG+3}], 0 sc1", "s_mov_b64 exec, -1", "s_branch L_noclr"]
        A("L_noclr:")
        A(f"s_cmp_eq_u32 s{sTYPE}, 0")
        A("s_cbranch_scc1 L_attn")
        srd(A, dB1, pB1, 2752)
        A(f"s_add_u32 s80, s83, s{sC}")
        A("s_lshl_b32 s81, s80, 12")
        A(f"s_add_u32 s{sA2}, s{sA2}, s81")
        A("s_lshl_b32 s80, s80, 6")
        A(f"v_lshlrev_b32 v{t+2}, 1, v{t}")
        A(f"v_lshl_add_u32 v{t+2}, v{t+1}, 20, v{t+2}")
        for u in range(3):
            A(f"buffer_load_ushort v{V['b1']+u}, v{t+2}, s[{dB1}:{dB1+3}], s80 offen offset:{128 * u}")
        self.kloop(False)
        self.mlp_tail()
        A("L_attn:")
        for u in range(3):
            A(f"v_mov_b32 v{V['b1']+u}, 0")
        A(f"v_bfe_u32 v{t+2}, v0, 2, 1")
        A(f"v_xor_b32 v{t+2}, v{t+2}, v{t+1}")
        A(f"v_bfe_u32 v{t+3}, v0, 4, 1")
        A(f"v_or_b32 v{t+2}, v{t+2}, v{t+3}")
        A(f"v_bfe_u32 v{t+3}, v0, 3, 1")
        A(f"v_lshl_add_u32 v{t+2}, v{t+2}, 1, v{t+3}")
        A(f"v_bfe_u32 v{t+3}, v0, 1, 1")
        A(f"v_lshl_add_u32 v{t+2}, v{t+2}, 1, v{t+3}")
        A(f"v_and_b32 v{t+3}, 1, v0")
        A(f"v_lshlrev_b32 v{t+3}, 4, v{t+3}")
        A(f"v_mov_b32 v{t+4}, 0x3f80")
        A(f"v_lshlrev_b32 v{t+3}, v{t+3}, v{t+4}")
        for q in range(4):
            A(f"v_cmp_eq_u32 vcc, {q}, v{t+2}")
            A(f"v_cndmask_b32 v{V['perm']+q}, 0, v{t+3}, vcc")
        sPG, sFK = 46, 49
        A(f"s_lshl1_add_u32 s{sPG}, s{sG}, s{sC}")
        A(f"s_lshl4_add_u32 s{sFK}, s{sPG}, s{sI}")
        A(f"s_lshl_b32 s{sFK}, s{sFK}, 7")
        A(f"s_add_u32 s{sFK}, s{sFK}, {WS_FLAG + FL_KV}")
        A(f"s_cmp_eq_u32 s{sR}, 0")
        A("s_cbranch_scc0 L_nopre")
        if not cfg.nopre:
            A(f"s_load_dword s64, s[{pWS}:{pWS+1}], s{sFK} glc")
        A("L_nopre:")
        self.kloop(True)
        self.attn_tail()

    def kloop(self, attn):
        A, V, sc = self.A, self.V, self.sc
        acc, fr, cs, st, t, aug = V["acc"], V["fr"], V["cs"], V["st"], V["t"], V["aug"]

        def reads(n):
            s, p = divmod(n, 4)
            slot = s % 3
            f = fr + 20 * (n % 2)
            wa = V["wa"] + (p >> 1) + (2 if slot == 2 else 0)
            wi = (0 if slot == 2 else slot * 24576) + p * 6144
            x = [f"ds_read_b128 {vr(f + 4 * a, 4)}, v{V['xa'] + 2 * p + a} offset:{(slot if s < 7 else 3) * 16384}" for a in range(2)]
            w = [f"ds_read_b64_tr_b16 {vr(f + 8 + 4 * u + 2 * j, 2)}, v{wa} offset:{wi + u * 2048 + j * 512}"
                 for u in range(3) for j in range(2)]
            return [x[0]] + w[:2] + [x[1]] + w[2:]

        def mfma(dst, xf, wf, u, c):
            a, b = (xf, wf) if (attn and u < 2) else (wf, xf)
            return f"v_mfma_f32_32x32x16_bf16 {vr(dst, 16)}, {vr(a, 4)}, {vr(b, 4)}, {c}"

        def stats(f):
            va = []
            for q in range(4):
                a, b = t + 2 * (q % 2), t + 2 * (q % 2) + 1
                va.append(f"v_lshlrev_b32 v{a}, 16, v{f + q}\nv_and_b32 v{b}, s{sc['sMASK']}, v{f + q}")
                va.append(f"v_add_f32 v{st}, v{st}, v{a}\nv_add_f32 v{st+1}, v{st+1}, v{b}")
                va.append(f"v_fmac_f32 v{st+2}, v{a}, v{a}\nv_fmac_f32 v{st+3}, v{b}, v{b}")
            return va[:1] if self.cfg.nostat else va

        tok = V["tok"]
        ms, r0 = aug + 1, V["r"]
        fin = [f"v_add_f32 v{st}, v{st}, v{t+4}\nv_add_f32 v{st+2}, v{st+2}, v{t+5}"] + self.stats_final(st, t, ms, r0, sc["sMASK"])
        put1 = [f"ds_write_b32 v{tok}, v{ms} offset:512", f"ds_write_b32 v{tok}, v{r0} offset:0",
                f"v_perm_b32 v{aug}, v{ms}, v{ms}, s{sc['sPERM'] + 1}"]
        put = [f"ds_write_b32 v1, v{cs + 4 * u} offset:{256 * u}" for u in range(3)] + [f"ds_write_b32 v3, v{V['one']}"]
        get = [f"ds_read_b32 v{cs + 4 * u + 1}, v2 offset:{256 * u}" for u in range(3)]
        get += [f"ds_read_b32 v{aug + 5}, v{tok + 1} offset:512", f"ds_read_b32 v{V['r'] + 2}, v{tok + 1} offset:0"]
        prep = [f"v_add_f32 v{cs + 4 * u}, v{cs + 4 * u}, v{cs + 4 * u + 1}" for u in range(3)]
        prep += [f"v_and_b32 v{cs + 4 * u + 1}, s{sc['sMASK']}, v{cs + 4 * u}" for u in range(3)]
        prep += [f"v_sub_f32 v{cs + 4 * u + 1}, v{cs + 4 * u}, v{cs + 4 * u + 1}" for u in range(3)]
        prep += [f"v_and_b32 v{cs + 4 * u + 2}, s{sc['sMASK']}, v{cs + 4 * u + 1}" for u in range(3)]
        prep += [f"v_perm_b32 v{aug + 8 + 4 * u}, v{cs + 4 * u + 1}, v{cs + 4 * u}, s{sc['sPERM']}" for u in range(3)]
        prep += [f"v_sub_f32 v{cs + 4 * u + 2}, v{cs + 4 * u + 1}, v{cs + 4 * u + 2}" for u in range(3)]
        prep += [f"v_perm_b32 v{aug + 9 + 4 * u}, v{V['b1'] + u}, v{cs + 4 * u + 2}, s{sc['sPERM']}" for u in range(3)]

        self.stamp("rdy")
        A("s_barrier")
        self.stamp("b0")
        for x in reads(0):
            A(x)
        for n in range(32):
            s, p = divmod(n, 4)
            f = fr + 20 * (n % 2)
            A("s_waitcnt lgkmcnt(0)" + (" vmcnt(0)" if n == 24 else ""))
            if self.cfg.kdiag and n in (self.cfg.kdiag - 1, self.cfg.kdiag + 3):
                self.stamp(f"pre{n}")
            if self.cfg.trace:
                if n > 0:
                    A(f"v_writelane_b32 v254, s100, {n - 1}")
                    A(f"v_writelane_b32 v254, s78, {32 + n - 1}")
                A("s_memtime s[100:101]")
                A("s_memrealtime s[78:79]")
            if self.cfg.cslow and n < 28:
                A(f"s_sleep {self.cfg.cslow}")
            if p == 3 and s < 7:
                A("s_barrier")
            if self.cfg.kdiag and self.cfg.kdiag - 1 <= n < self.cfg.kdiag + 4:
                self.stamp(f"n{n}")
            prim = []
            for u in range(3):
                for a in range(2):
                    d = acc + 16 * (2 * u + a)
                    prim.append(mfma(d, f + 4 * a, f + 8 + 4 * u, u, "0" if n == 0 else vr(d, 16)))
                if p < 2 and not (self.cfg.nocs and n > 0):
                    d = cs + 4 * u
                    prim[-1] = f"v_mfma_f32_16x16x32_bf16 {vr(d, 4)}, {vr(V['sel'], 4)}, {vr(f + 8 + 4 * u, 4)}, " + ("0" if n == 0 else vr(d, 4)) + "\n" + prim[-1]
            def checked(off, gets, vT):
                slow, back = self.label("xs"), self.label("xb")
                rd = [self.lds_flag_read(V["fl"], off, 4, vT)] + gets
                chk = ["s_waitcnt lgkmcnt(0)"] + self.lds_flag_test(4, vT) + [f"s_cbranch_scc1 {slow}", f"{back}:"]
                B = Asm()
                B(f"{slow}:")
                self.lds_spin(V["fl"], off, 4, vT, gets, A=B)
                B(f"s_branch {back}")
                self.cold += B.lines
                return rd, chk
            if n < 28:
                extra = []
                if n == 24:
                    extra = [f"v_lshlrev_b32 v{V['b1'] + u}, 16, v{V['b1'] + u}" for u in range(3)]
                    extra += [f"ds_read_b32 v{V['tag']}, v{V['fl']} offset:256"]
                if n == 25:
                    extra = [f"s_lshl_b32 s80, s{sW}, 9", f"s_add_u32 s80, s80, {L_PS}", f"v_lshl_add_u32 v{t+6}, v0, 3, s80"]
                if n == 26:
                    extra = [f"ds_read_b64 {vr(t + 4, 2)}, v{t+6}"]
                seq = interleave(prim, (reads(n + 1) + extra, 0, 3), (stats(f), 0, 5))
            elif n == 28:
                seq = interleave(prim, (reads(29), 0, 3), (fin[:10], 0, 5))
            elif n == 29:
                seq = interleave(prim, (reads(30), 0, 3), (fin[10:], 0, 4), (put1, 5, 5))
            elif n == 30:
                seq = interleave(prim, (reads(31), 0, 2), (put, 3, 3))
            else:
                rd, chk = checked(0, get, t + 4)
                xp = [f"v_perm_b32 v{aug + 4}, v{aug + 5}, v{aug + 5}, s{sc['sPERM'] + 1}"]
                seq = rd + interleave(prim, (chk, 1, 1), (xp + prep, 2, 5))
            for x in seq:
                A(x)
        self.stamp("T1")
        prim = []
        for u in range(3):
            for a in range(2):
                d = acc + 16 * (2 * u + a)
                prim.append(mfma(d, aug + 4 * a, aug + 8 + 4 * u, u, vr(d, 16)))
        if attn:
            rd = [f"v_lshrrev_b32 v{t+2}, 5, v0", f"s_lshl_b32 s80, s{sW}, 7", f"s_add_u32 s80, s80, {L_R}",
                  f"v_lshl_add_u32 v{t+2}, v{t+2}, 4, s80", f"v_xor_b32 v{t+3}, 0x80, v{t+2}"]
            rd += [f"ds_read_b128 {vr(V['rT'] + 16 * a + 4 * j, 4)}, v{t + 2 + a} offset:{32 * j}" for a in range(2) for j in range(4)]
            prim = interleave(prim, (rd, 0, 2))
        for x in prim:
            A(x)
        if attn:
            A("s_waitcnt lgkmcnt(0)")
        self.stamp("aug")

    def stats_final(self, st, t, ms, r0, sMASK):
        return [
            f"v_add_f32 v{st}, v{st}, v{st+1}\nv_add_f32 v{st+2}, v{st+2}, v{st+3}",
            f"v_mov_b32 v{st+1}, v{st}\nv_mov_b32 v{st+3}, v{st+2}",
            f"v_permlane32_swap_b32 v{st}, v{st+1}\nv_permlane32_swap_b32 v{st+2}, v{st+3}",
            f"v_add_f32 v{st}, v{st}, v{st+1}\nv_add_f32 v{st+2}, v{st+2}, v{st+3}",
            f"v_mul_f32 v{st}, 0xbb000000, v{st}",
            f"v_mul_f32 v{st+2}, 0x3b000000, v{st+2}",
            f"v_fma_f32 v{st+2}, -v{st}, v{st}, v{st+2}",
            f"v_max_f32 v{st+2}, 0, v{st+2}",
            f"v_cvt_pk_bf16_f32 v{t}, v{st+2}, v{st+2}",
            f"v_and_b32 v{t}, s{sMASK}, v{t}",
            f"v_add_f32 v{t}, 0x3727c5ac, v{t}",
            f"v_cvt_pk_bf16_f32 v{t}, v{t}, v{t}",
            f"v_and_b32 v{t}, s{sMASK}, v{t}",
            f"v_sqrt_f32 v{t}, v{t}",
            f"v_cvt_pk_bf16_f32 v{ms}, v{st}, v{t}",
            f"v_and_b32 v{t}, s{sMASK}, v{ms}",
            f"v_rcp_f32 v{r0}, v{t}",
        ]

    def mlp_tail(self):
        A, V, sc = self.A, self.V, self.sc
        acc, t, dWS = V["acc"], V["t"], self.dWS
        A(f"s_lshl_b32 s80, s{sc['sC']}, 10")
        A(f"v_add_u32 v{t}, s80, v{V['l16']}")
        A(f"v_xor_b32 v{t+1}, 0x400, v{t}")
        for u in range(3):
            if u == 2:
                A(f"s_bitcmp1_b32 0xea, s{sG}")
                A(f"s_cselect_b32 s80, s{sc['sC']}, 0")
                A("s_cmp_eq_u32 s80, 1")
                A("s_cbranch_scc1 L_mlp_done")
            for a in range(2):
                d = acc + 16 * (2 * u + a)
                pk = V["fr"] + 8 * a
                for q in range(8):
                    A(f"v_pk_mul_f32 {vr(d + 2 * q, 2)}, {vr(d + 2 * q, 2)}, {vr(V['r'] + 2 * a, 2)} op_sel_hi:[1,0]")
                for q in range(16):
                    A(f"v_max_f32 v{d + q}, 0, v{d + q}")
                for q in range(8):
                    A(f"v_pk_mul_f32 {vr(d + 2 * q, 2)}, {vr(d + 2 * q, 2)}, {vr(d + 2 * q, 2)}")
                for s in range(2):
                    for q in range(4 * s, 4 * s + 4):
                        A(f"v_cvt_pk_bf16_f32 v{pk + q}, v{d + 2 * q}, v{d + 2 * q + 1}")
                    if not self.cfg.nost:
                        A(f"buffer_store_dwordx4 {vr(pk + 4 * s, 4)}, v{t + a}, s[{dWS}:{dWS+3}], s{sc['sA2']} offen offset:{2048 * s} sc1")
            A(f"s_add_u32 s{sc['sA2']}, s{sc['sA2']}, 0x2000")
        A("L_mlp_done:")
        if self.cfg.pause_m:
            A(f"ds_write_b32 v3, v{V['one']} offset:48")
        self.stamp("stored")
        A(f"v_lshlrev_b32 v{t+2}, 9, v0")
        A("s_waitcnt vmcnt(0)")
        self.set_flag(dWS, sc["sFL"], t + 2, 8)
        self.stamp("flag")
        self.stamp_out("mlp")
        A("s_endpgm")
        self.flush_cold()
        self.stamped = self.stamped[:2]

    def phi(self, d, rsrc, pk, tmp):
        A, sc = self.A, self.sc
        e, l = sr(sc["sEPS"], 2), sr(sc["sL2E"], 2)
        for q in range(8):
            A(f"v_pk_fma_f32 {vr(d + 2 * q, 2)}, {vr(d + 2 * q, 2)}, {rsrc(q)[0]}, {e}{rsrc(q)[1]}")
        for q in range(8):
            A(f"v_pk_mul_f32 {vr(tmp + 2 * q, 2)}, {vr(d + 2 * q, 2)}, {l}")
        for q in range(16):
            A(f"v_exp_f32_e64 v{tmp + q}, v{tmp + q} clamp")
            A(f"v_max_f32_e64 v{d + q}, s{sc['sEPS']}, v{d + q}")
        for q in range(8):
            A(f"v_pk_add_f32 {vr(d + 2 * q, 2)}, {vr(d + 2 * q, 2)}, {vr(tmp + 2 * q, 2)}")
        for q in range(8):
            A(f"v_cvt_pk_bf16_f32 v{pk + q}, v{d + 2 * q}, v{d + 2 * q + 1}")

    def attn_tail(self):
        A, V, sc = self.A, self.V, self.sc
        acc, t, dWS, fr, rT = V["acc"], V["t"], self.dWS, V["fr"], V["rT"]
        sR, sC, sHI = sc["sR"], sc["sC"], sc["sHI"]
        hi = sr(sHI, 2)
        if self.cfg.nochain:
            self.stamp_out("att")
            A("s_endpgm")
            self.flush_cold()
            return
        tmp = V["cs"]
        pkf, vf = fr, fr + 16
        for a in range(2):
            self.phi(acc + 16 * a, lambda q: (vr(rT + 16 * a + 2 * q, 2), ""), pkf + 8 * a, tmp)
            d = acc + 32 + 16 * a
            for q in range(8):
                A(f"v_pk_mul_f32 {vr(d + 2 * q, 2)}, {vr(d + 2 * q, 2)}, {vr(rT + 16 * a + 2 * q, 2)}")
            for q in range(8):
                A(f"v_cvt_pk_bf16_f32 v{vf + 8 * a + q}, v{d + 2 * q}, v{d + 2 * q + 1}")
        D1, D2 = acc, acc + 16
        for k in range(4):
            A(f"v_mfma_f32_32x32x16_bf16 {vr(D1, 16)}, {vr(pkf + 4 * k, 4)}, {vr(vf + 4 * k, 4)}, " + ("0" if k == 0 else vr(D1, 16)))
            A(f"v_mfma_f32_32x32x16_bf16 {vr(D2, 16)}, {vr(pkf + 4 * k, 4)}, {vr(V['ones'], 4)}, " + ("0" if k == 0 else vr(D2, 16)))
        sPG, sKV, sZ, sFK, sTAG = 46, 47, 48, 49, 50
        A(f"s_lshl4_add_u32 s80, s{sPG}, s{sI}")
        A(f"s_lshl_b32 s{sKV}, s80, 10")
        A(f"s_add_u32 s{sKV}, s{sKV}, {WS_KVP}")
        A(f"s_lshl_b32 s{sZ}, s80, 7")
        A(f"s_add_u32 s{sZ}, s{sZ}, {WS_ZP}")
        A(f"v_readfirstlane_b32 s{sTAG}, v{V['tag']}")
        A(f"s_lshl_b32 s80, s{sC}, 12")
        A(f"s_add_u32 s80, s80, {L_KVX}")
        vx, vfl = t, t + 1
        A(f"v_add_u32 v{vx}, s80, v{V['l16']}")
        A(f"s_lshl_b32 s80, s{sC}, 2")
        A(f"v_add_u32 v{vfl}, s80, v{V['fl']}")
        A(f"v_lshrrev_b32 v{t+2}, 4, v0")
        A(f"v_lshlrev_b32 v{t+2}, 5, v{t+2}")
        KV, Z = acc + 32, acc + 40
        for e in range(8):
            A(f"v_cndmask_b32 v{KV + e}, v{D1 + e}, v{D1 + 8 + e}, {hi}")
        for e in range(8):
            A(f"v_cndmask_b32 v{Z + e}, v{D2 + 8 + e}, v{D2 + e}, {hi}")
        A(f"s_cmp_eq_u32 s{sR}, 0")
        A("s_cbranch_scc1 L_kv_r0")
        for q in range(4):
            A(f"ds_write_b128 v{vx}, {vr(KV + 4 * q, 4)} offset:{1024 * q}")
        A(f"ds_write_b32 v{vfl}, v{V['one']} offset:16")
        A("s_branch L_kv_join")
        A("L_kv_r0:")
        o = acc + 48
        self.lds_spin(vfl, 16, 1, t + 4, [f"ds_read_b128 {vr(o + 4 * q, 4)}, v{vx} offset:{1024 * q}" for q in range(4)])
        for q in range(8):
            A(f"v_pk_add_f32 {vr(KV + 2 * q, 2)}, {vr(KV + 2 * q, 2)}, {vr(o + 2 * q, 2)}")
        for q in range(4):
            A(f"v_cvt_pk_bf16_f32 v{o + q}, v{KV + 2 * q}, v{KV + 2 * q + 1}")
        A(f"buffer_store_dwordx4 {vr(o, 4)}, v{V['l16']}, s[{dWS}:{dWS+3}], s{sKV} offen sc1")
        A(f"v_and_b32 v{t+3}, 1, v0")
        A(f"v_cmp_eq_u32 vcc, 1, v{t+3}")
        A(f"v_lshl_add_u32 v{t+3}, v{t+3}, 4, v{t+2}")
        for q in range(4):
            A(f"v_cndmask_b32 v{Z + q}, v{Z + q}, v{Z + 4 + q}, vcc")
        A("s_mov_b32 exec_lo, 0x00030003")
        A("s_mov_b32 exec_hi, 0x00030003")
        A(f"buffer_store_dwordx4 {vr(Z, 4)}, v{t+3}, s[{dWS}:{dWS+3}], s{sZ} offen sc1")
        A("s_mov_b64 exec, -1")
        A("L_kv_join:")
        if self.cfg.pause_a and self.cfg.arel == 0:
            A(f"ds_write_b32 v3, v{V['one']} offset:48")
        self.stamp("kvst")
        pq = fr
        for a in range(2):
            self.phi(acc + 64 + 16 * a, lambda q: (vr(V["r"] + 2 * a, 2), " op_sel_hi:[1,0,1]"), pq + 8 * a, tmp)
        A(f"s_lshl_b32 s80, s{sPG}, 12")
        A(f"s_add_u32 s{sc['sA2']}, s{sc['sA2']}, s80")
        A(f"s_add_u32 s{sc['sA2']}, s{sc['sA2']}, {NSTEP_H * 2048}")
        A(f"s_add_u32 s{sc['sFL']}, s{sc['sFL']}, 16")
        A(f"s_lshl_b32 s80, s{sC}, 10")
        A(f"v_add_u32 v{V['st']+2}, s80, v{V['l16']}")
        A(f"v_xor_b32 v{V['st']+3}, 0x400, v{V['st']+2}")
        A(f"v_lshlrev_b32 v{V['st']}, 9, v0")
        Zb, KVb, op0, op1 = tmp, tmp + 4, tmp + 8, tmp + 12
        A(f"s_cmp_eq_u32 s{sR}, 0")
        A("s_cbranch_scc1 L_gather")
        if self.cfg.pause_a and self.cfg.arel == 1:
            A(f"ds_write_b32 v3, v{V['one']} offset:48")
        for n in ("kvflag", "kvseen", "kvld"):
            self.stamp(n)
        self.stamped = self.stamped[:-3] if self.cfg.stamps else self.stamped
        self.lds_spin(vfl, 32, 1, t + 4, [f"ds_read_b128 {vr(op0 + 4 * q, 4)}, v{vx} offset:{1024 * q}" for q in range(2)], sleep=1)
        A("s_branch L_o")
        A("L_gather:")
        A(f"s_mov_b32 s{sTAG+1}, s{sTAG}")
        A(f"s_lshl_b32 s80, s{sPG}, 9")
        A(f"s_add_u32 s80, s80, s{sI}")
        A("s_lshl_b32 s82, s80, 2")
        A(f"s_add_u32 s82, s82, {WS_FLAG + FL_KV}")
        A(f"v_lshlrev_b32 v{t+4}, 7, v0")
        A("s_waitcnt vmcnt(0)")
        self.set_flag(dWS, 82, t + 4, 16)
        if self.cfg.pause_a and self.cfg.arel == 1:
            A(f"ds_write_b32 v3, v{V['one']} offset:48")
        self.stamp("kvflag")
        A(f"s_lshl_b32 s{sKV}, s{sPG}, 14")
        A(f"s_add_u32 s{sKV}, s{sKV}, {WS_KVP}")
        A(f"s_lshl_b32 s{sZ}, s{sPG}, 11")
        A(f"s_add_u32 s{sZ}, s{sZ}, {WS_ZP}")
        A(f"v_and_b32 v{t+3}, 15, v0")
        A(f"v_lshl_add_u32 v{t+2}, v{t+3}, 7, v{t+2}")
        self.wait_flags(sFK, 16, sTAG)
        self.stamp("kvseen")
        Z, part = acc + 16, acc + 32
        for q in range(2):
            A(f"buffer_load_dwordx4 {vr(Z + 4 * q, 4)}, v{t+2}, s[{dWS}:{dWS+3}], s{sZ} offen offset:{16 * q} sc1")
        for p in range(16):
            A(f"buffer_load_dwordx4 {vr(part + 4 * p, 4)}, v{V['l16']}, s[{dWS}:{dWS+3}], s{sKV} offen offset:{1024 * (p % 4)} sc1")
            if p % 4 == 3 and p < 15:
                A(f"s_add_u32 s{sKV}, s{sKV}, 0x1000")
        A("s_waitcnt vmcnt(16)")
        dpp = [f"v_add_f32_dpp v{Z + e}, v{Z + e}, v{Z + e} row_ror:{sh} row_mask:0xf bank_mask:0xf" for sh in (8, 4, 2, 1) for e in range(8)]
        dpp += [f"v_cvt_pk_bf16_f32 v{Zb + q}, v{Z + 2 * q}, v{Z + 2 * q + 1}" for q in range(4)]
        prim = [f"s_waitcnt vmcnt({15 - p})\nv_mfma_f32_32x32x16_bf16 {vr(D1, 16)}, {vr(V['perm'], 4)}, {vr(part + 4 * p, 4)}, " + ("0" if p == 0 else vr(D1, 16)) for p in range(16)]
        for x in interleave(prim, (dpp, 0, 8)):
            A(x)
        self.stamp("kvld")
        for q in range(4):
            A(f"v_cvt_pk_bf16_f32 v{KVb + q}, v{D1 + 2 * q}, v{D1 + 2 * q + 1}")
        for q in range(4):
            A(f"v_cndmask_b32 v{op0 + q}, v{KVb + q}, v{Zb + q}, {hi}")
        for q in range(4):
            A(f"v_cndmask_b32 v{op1 + q}, v{Zb + q}, v{KVb + q}, {hi}")
        for q in range(2):
            A(f"ds_write_b128 v{vx}, {vr(op0 + 4 * q, 4)} offset:{1024 * q}")
        A(f"ds_write_b32 v{vfl}, v{V['one']} offset:32")
        A("L_o:")
        for a in range(2):
            for s in range(2):
                d = acc + 16 * (2 * a + s)
                A(f"v_mfma_f32_32x32x16_bf16 {vr(d, 16)}, {vr(op0 + 4 * s, 4)}, {vr(pq + 8 * a + 4 * s, 4)}, 0")
        ob = fr + 16
        for a in range(2):
            for s in range(2):
                d = acc + 16 * (2 * a + s)
                num, den = (d, d + 8) if s == 0 else (d + 8, d)
                A(f"v_add_f32 v{den}, s{sc['sEPS']}, v{den}")
                A(f"v_rcp_f32 v{den}, v{den}")
                for q in range(4):
                    A(f"v_pk_mul_f32 {vr(num + 2 * q, 2)}, {vr(num + 2 * q, 2)}, {vr(den, 2)} op_sel_hi:[1,0]")
                p = ob + 4 * (2 * a + s)
                for q in range(4):
                    A(f"v_cvt_pk_bf16_f32 v{p + q}, v{num + 2 * q}, v{num + 2 * q + 1}")
                A(f"buffer_store_dwordx4 {vr(p, 4)}, v{V['st'] + 2 + a}, s[{dWS}:{dWS+3}], s{sc['sA2']} offen offset:{2048 * s} sc1")
        self.stamp("ost")
        A("s_waitcnt vmcnt(0)")
        self.set_flag(dWS, sc["sFL"], V["st"], 8)
        self.stamp("oflag")
        self.stamp_out("att")
        A("s_endpgm")
        self.flush_cold()

    def build(self):
        self.entry()
        self.lwave()
        self.cwave()
        self.A("L_end:")
        body = self.A.finish()
        here = os.path.dirname(os.path.abspath(__file__))
        head = open(os.path.join(here, "header.txt")).read()
        launch = f"; @launch grid=(256,1,1) block=(512,1,1) lds={LDS_BYTES}"
        extra = ""
        if self.cfg.lst:
            a = f"; @launch kernel={NAME} grid=(256,1,1) block=(512,1,1) lds={LDS_BYTES}"
            b = "; @launch kernel=e_kernel grid=(1,1,1) block=(64,1,1) lds=0"
            launch = a + "\n" + b if self.cfg.lst == 1 else (b + "\n" + a if self.cfg.lst == 2 else a)
            body += "\n.p2align 8\n.globl e_kernel\n.type e_kernel,@function\ne_kernel:\n    s_endpgm\n"
            extra = """.p2align 6
.amdhsa_kernel e_kernel
  .amdhsa_next_free_vgpr 8
  .amdhsa_next_free_sgpr 16
  .amdhsa_accum_offset 8
  .amdhsa_group_segment_fixed_size 0
  .amdhsa_kernarg_size 88
  .amdhsa_user_sgpr_count 2
  .amdhsa_user_sgpr_kernarg_segment_ptr 1
  .amdhsa_system_sgpr_workgroup_id_x 1
.end_amdhsa_kernel
"""
        return f"""{head}{launch}
.amdgcn_target "amdgcn-amd-amdhsa--gfx950"
.text
.globl {NAME}
.p2align 8
.type {NAME},@function
{NAME}:
{body}
.section .rodata,"a"
.p2align 6
.amdhsa_kernel {NAME}
  .amdhsa_next_free_vgpr 256
  .amdhsa_next_free_sgpr 102
  .amdhsa_accum_offset 256
  .amdhsa_group_segment_fixed_size 0
  .amdhsa_kernarg_size 88
  .amdhsa_user_sgpr_count 2
  .amdhsa_user_sgpr_kernarg_segment_ptr 1
  .amdhsa_system_sgpr_workgroup_id_x 1
.end_amdhsa_kernel
{extra}"""


def generate(**kw):
    cfg = Cfg()
    for k, v in kw.items():
        assert hasattr(cfg, k), k
        setattr(cfg, k, v)
    return Gen(cfg).build()


if __name__ == "__main__":
    out = sys.argv[1]
    kw = {}
    for a in sys.argv[2:]:
        k, v = a.split("=")
        kw[k] = int(v) if v.lstrip("-").isdigit() else v
    open(out, "w").write(generate(**kw))
```
